```python
import torch

def _softmax(x, axis=-1):
    return torch.softmax(x, dim=axis)

def _gelu(x):
    return torch.nn.functional.gelu(x, approximate='tanh')

def _silu(x):
    return torch.nn.functional.silu(x)

def _sigmoid(x):
    return torch.sigmoid(x)

def _layernorm(x, axis=-1, eps=1e-05):
    m = x.mean(dim=axis, keepdim=True)
    v = x.var(dim=axis, keepdim=True, unbiased=False)
    return (x - m) / torch.sqrt(v + eps)

def _scatter_add(tgt, idx, src, axis=0):
    return tgt.clone().index_add_(axis, idx, src)

def _segment_sum(src, seg, n):
    out = torch.zeros((n,) + src.shape[1:], dtype=src.dtype)
    return out.index_add_(0, seg, src)

def _pad(x, pw):
    flat = tuple((v for pair in reversed(pw) for v in pair))
    return torch.nn.functional.pad(x, flat)
kernel_name = 'gated_mix__memory_aug_recurrent_mem_tr__mha_block__prompt'

def setup_inputs():

    _w = lambda a: (lambda t: t.to(torch.bfloat16) if t.is_floating_point() else t)(torch.as_tensor(a))

    def _A_setup():
        B, S, Dm = (1, 2048, 640)
        H, Dh = (32, 192)
        M, seg = (8, 32)
        seg = min(seg, S)
        S = S // seg * seg
        return {'x': _w((lambda *s: torch.randn(*s, dtype=torch.bfloat16) * 0.05)(B, S, Dm)), 'mem0': _w((lambda *s: torch.randn(*s, dtype=torch.bfloat16) * 0.8)(B, M, Dm)), 'Wq': _w((lambda *s: torch.randn(*s, dtype=torch.bfloat16) * 1.6)(Dm, H, Dh) * Dm ** (-0.5)), 'Wk': _w((lambda *s: torch.randn(*s, dtype=torch.bfloat16) * 1.6)(Dm, H, Dh) * Dm ** (-0.5)), 'Wv': _w((lambda *s: torch.randn(*s, dtype=torch.bfloat16) * 0.8)(Dm, H, Dh) * Dm ** (-0.5)), 'Wo': _w((lambda *s: torch.randn(*s, dtype=torch.bfloat16) * 0.8)(H, Dh, Dm) * (H * Dh) ** (-0.5)), 'seg_len': seg}
    _A_in = _A_setup()

    def _B_setup():
        B, S, D, H = (1, 2048, 640, 32)
        return {'x': _w((lambda *s: torch.randn(*s, dtype=torch.bfloat16) * 0.05)(B, S, D)), 'wqkv': _w((lambda *s: torch.randn(*s, dtype=torch.bfloat16) * 0.8)(D, 3 * D)), 'wo': _w((lambda *s: torch.randn(*s, dtype=torch.bfloat16) * 0.05)(D, D))}
    _B_in = _B_setup()
    return {'A_x': _A_in['x'], 'A_mem0': _A_in['mem0'], 'A_Wq': _A_in['Wq'], 'A_Wk': _A_in['Wk'], 'A_Wv': _A_in['Wv'], 'A_Wo': _A_in['Wo'], 'A_seg_len': _A_in['seg_len'], 'B_x': _B_in['x'], 'B_wqkv': _B_in['wqkv'], 'B_wo': _B_in['wo'], 'gate_w': _w((lambda *s: torch.randn(*s, dtype=torch.bfloat16) * 0.05)(640) * 16.0)}

def reference(A_x, A_mem0, A_Wq, A_Wk, A_Wv, A_Wo, A_seg_len, B_x, B_wqkv, B_wo, gate_w):

    def _A_ref(x, mem0, Wq, Wk, Wv, Wo, seg_len):
        B, S, Dm = x.shape
        H, Dh = (Wq.shape[1], Wq.shape[2])
        M = mem0.shape[1]
        scale = Dh ** (-0.5)
        n_seg = S // seg_len
        L = M + seg_len
        idx = torch.arange(L)
        mask = (idx[:, None] < M) | (idx[:, None] >= idx[None, :])
        mem = mem0
        outs = []
        for s in range(n_seg):
            xs = x[:, s * seg_len:(s + 1) * seg_len, :].clone()
            h = torch.concatenate([mem, xs], axis=1)
            q = torch.einsum('btd,dhe->bhte', h, Wq)
            k = torch.einsum('btd,dhe->bhte', h, Wk)
            v = torch.einsum('btd,dhe->bhte', h, Wv)
            scores = torch.einsum('bhqe,bhke->bhqk', q, k) * scale
            scores = torch.where(mask[None, None], scores, -1000000000.0)
            p = _softmax(scores, axis=-1)
            o = torch.einsum('bhqk,bhke->bhqe', p, v)
            o = torch.einsum('bhte,hed->btd', o, Wo)
            mem = o[:, :M, :].clone()
            outs.append(o[:, M:, :])
        return torch.concatenate(outs, axis=1)

    def _B_ref(x, wqkv, wo):
        B, S, D = x.shape
        H = 32
        Dh = D // H
        qkv = (lambda x, *d: x.permute(*d))((x @ wqkv).reshape(B, S, 3, H, Dh), 2, 0, 3, 1, 4)
        q, k, v = (qkv[0], qkv[1], qkv[2])
        scores = torch.einsum('bhqd,bhkd->bhqk', q, k) * Dh ** (-0.5)
        p = _softmax(scores, axis=-1)
        o = torch.einsum('bhqk,bhkd->bhqd', p, v)
        return (lambda x, *d: x.permute(*d))(o, 0, 2, 1, 3).reshape(B, S, D) @ wo
    x = A_x
    g = _sigmoid((x * gate_w).sum(-1, keepdims=True))
    a = _A_ref(x, A_mem0, A_Wq, A_Wk, A_Wv, A_Wo, A_seg_len)
    b = _B_ref(x, B_wqkv, B_wo)
    return g * a + (1 - g) * b
```

```python
class E:
    def __init__(self):
        self.l=[]; self.n=0
    def __call__(self,s=""):
        for x in s.split("\n"):
            self.l.append(x)
    def lab(self,name): self.l.append(name+":")
    def uid(self,p="L"):
        self.n+=1; return "%s_%d"%(p,self.n)
    def text(self): return "\n".join(self.l)+"\n"
    def srd(self,d,base,nbytes):
        self("s_mov_b32 s%d, s%d"%(d,base))
        self("s_and_b32 s%d, s%d, 0xffff"%(d+1,base+1))
        self("s_mov_b32 s%d, 0x%x"%(d+2,nbytes))
        self("s_mov_b32 s%d, 0x20000"%(d+3))
def vr(a,n): return "v[%d:%d]"%(a,a+n-1) if n>1 else "v%d"%a
def ar(a,n): return "a[%d:%d]"%(a,a+n-1) if n>1 else "a%d"%a
def sr(a,n): return "s[%d:%d]"%(a,a+n-1) if n>1 else "s%d"%a
def kdesc(name,vgpr,sgpr,accum,karg=112):
    return """.section .rodata,"a"
.p2align 6
.amdhsa_kernel %s
  .amdhsa_next_free_vgpr %d
  .amdhsa_next_free_sgpr %d
  .amdhsa_accum_offset %d
  .amdhsa_group_segment_fixed_size 0
  .amdhsa_kernarg_size %d
  .amdhsa_user_sgpr_count 2
  .amdhsa_user_sgpr_kernarg_segment_ptr 1
  .amdhsa_system_sgpr_workgroup_id_x 1
.end_amdhsa_kernel
"""%(name,vgpr,sgpr,accum,karg)
```

```python
from kb import *
from lay import *
from k import flag_store,get_nonce,xgemm,W5,wreg,P_QKV,P_BWO,P_OUT
from chain import wait_flags,fb,zero
import math
SC_B=20**-0.5*math.log2(math.e)
def load5(g,ptr,nbytes,rowstride,col_s,row0_s,k2s,WR,ring):
    g.srd2(12,ptr,nbytes)
    g("s_mul_i32 s28, s24, %d"%ring)
    g.dma_voffs(16,5,10,rowstride,None,col_s,24)
    g.tr_addrs(5,None,160,8,"s28",False,24)
    ch=[]
    for n in range(k2s):
        rd=[]
        for t in range(5):
            p,r=WR(n,t)
            for hf in range(2): rd.append((p,r+2*hf,5,t*32+hf*640))
        ch.append(dict(srd=12,voff=16,nblk=5,soff_s=row0_s,soff_c=n*32*rowstride,reads=rd))
    g.loader(ch,ring,"s28")
def role_b1(g,opt):
    g.lab("L_B1")
    get_nonce(g,"B1")
    g("s_mul_i32 s29, s25, 43\ns_lshr_b32 s29, s29, 8\ns_mul_i32 s26, s29, 6\ns_sub_u32 s26, s25, s26")
    g("s_lshl_b32 s41, s29, 10\ns_add_u32 s41, s41, %d\nv_mov_b32 v13, 0"%BF); wait_flags(g,"B1_w",13,"s41","0",10)
    g("s_mul_i32 s30, s26, 640\ns_mul_i32 s31, s24, 160\ns_add_u32 s30, s30, s31\ns_mov_b32 s31, 0")
    load5(g,P_QKV,640*3840,3840,"s30","s31",20,W5,20480); g.ts(1)
    g("s_lshl_b32 s32, s29, 4\ns_mov_b32 s33, 1\ns_lshl_b32 s34, s25, 7\ns_add_u32 s34, s34, %d"%B1F)
    g("s_and_b32 s41, s26, 1\ns_lshl_b32 s41, s41, 4\ns_lshl_b32 s42, s24, 2\ns_add_u32 s41, s41, s42\ns_mov_b32 s55, 196608\ns_mov_b32 s56, 3072\ns_mov_b32 s45, %d\ns_mov_b32 s54, 1.0"%KV)
    g("s_cmp_ge_u32 s26, 2\ns_cbranch_scc1 B1_a\ns_mov_b32 s55, 98304\ns_mov_b32 s56, 1536\ns_mov_b32 s45, %d\ns_mov_b32 s54, %s"%(QB,fb(SC_B)))
    g.lab("B1_a")
    g("s_mul_i32 s41, s41, s55\ns_add_u32 s45, s45, s41\ns_cmp_ge_u32 s26, 4\ns_cbranch_scc1 B1_v")
    PK=72; AD=92
    def mk(cvt,extra,rtoff,p,swap):
        def stores(srd):
            L=[]
            for n,(t,rt) in enumerate([(t,rt) for t in range(5) for rt in range(2)]):
                def f(n=n,t=t,rt=rt):
                    if n==0: g("s_mul_i32 s52, s47, s56\ns_add_u32 s52, s52, s45")
                    g("buffer_store_dwordx2 v[%d:%d], v%d, %s, s52 offen offset:%d sc1"%(PK+(t*2+rt)*2,PK+(t*2+rt)*2+1,AD+t,srd,rt*rtoff))
                L.append(f)
            return L+extra(srd)
        xgemm(g,p,5,W5,98304,16,False,cvt,stores,swap,56)
        g("s_branch L_T")
    for t in range(5):
        g("v_add_u32 v12, %d, v3"%(4*t)); g.divc(13,14,12,5,15)
        g("v_mul_lo_u32 v13, v13, s55\nv_lshrrev_b32 v15, 1, v14\nv_lshlrev_b32 v15, 9, v15\nv_and_b32 v14, 1, v14\nv_lshl_add_u32 v14, v14, 3, v15\nv_lshl_add_u32 v14, v2, 4, v14\nv_add_u32 v%d, v13, v14"%(AD+t))
    g("v_mul_lo_u32 v13, v3, s55\nv_lshl_add_u32 v13, v2, 4, v13\nv_add_u32 v%d, 1032, v13\nv_mov_b64 v[98:99], 0"%(AD+5))
    def cvt(t):
        for rt in range(2):
            a=16+(t*2+rt)*4; pk=PK+(t*2+rt)*2
            g("v_pk_mul_f32 v[%d:%d], v[%d:%d], s[54:55] op_sel_hi:[1,0]\nv_pk_mul_f32 v[%d:%d], v[%d:%d], s[54:55] op_sel_hi:[1,0]"%(a,a+1,a,a+1,a+2,a+3,a+2,a+3))
            g("v_cvt_pk_bf16_f32 v%d, v%d, v%d\nv_cvt_pk_bf16_f32 v%d, v%d, v%d"%(pk,a,a+1,pk+1,a+2,a+3))
    mk(cvt,lambda srd:[(lambda rt=rt: g("buffer_store_dwordx2 v[98:99], v%d, %s, s52 offen offset:%d sc1"%(AD+5,srd,rt*256))) for rt in range(2)],256,"B1q",False)
    g.lab("B1_v")
    for t in range(5):
        g("v_add_u32 v12, %d, v2"%(16*t)); g.divc(13,14,12,20,15)
        g("v_mul_lo_u32 v13, v13, s55\nv_lshl_add_u32 v13, v14, 4, v13\nv_and_b32 v14, 1, v3\nv_mul_u32_u24 v14, 336, v14\nv_lshrrev_b32 v15, 1, v3\nv_lshl_add_u32 v14, v15, 3, v14\nv_add3_u32 v%d, v13, v14, %s"%(AD+t,"0"))
        g("v_add_u32 v%d, 1536, v%d"%(AD+t,AD+t))
    g("v_lshrrev_b32 v13, 2, v2\nv_mul_lo_u32 v13, v13, s55\nv_and_b32 v14, 3, v2\nv_mul_u32_u24 v14, 336, v14\nv_add_u32 v13, v13, v14\nv_add_u32 v%d, 1856, v13"%(AD+5))
    for r in range(4): g("v_mov_b32 v%d, 0x3f803f80"%(100+r))
    def cvtv(t):
        for rt in range(2):
            a=16+(t*2+rt)*4; pk=PK+(t*2+rt)*2
            g("v_cvt_pk_bf16_f32 v%d, v%d, v%d\nv_cvt_pk_bf16_f32 v%d, v%d, v%d"%(pk,a,a+1,pk+1,a+2,a+3))
    mk(cvtv,lambda srd:[lambda: g("buffer_store_dwordx4 v[100:103], v%d, %s, s52 offen sc1"%(AD+5,srd))],672,"B1v",True)

def role_t(g,opt):
    Q=16; NM=32; O=64; S=96; P=128; KF=144; VF=160; T=176
    TH=8.0
    g.lab("L_T"); g.ts(3)
    g.lab("T_next")
    g("s_barrier\ns_cmp_lg_u32 s24, 0\ns_cbranch_scc1 T_q\nv_mov_b32 v14, 1\nv_mov_b32 v15, %d\ns_mov_b64 exec, 1\nbuffer_atomic_add v14, v15, s[20:23], 0 offen sc0 sc1\ns_waitcnt vmcnt(0)\nv_mov_b32 v15, 0\nds_write_b32 v15, v14 offset:65024\ns_waitcnt lgkmcnt(0)\ns_mov_b64 exec, -1"%D_QH)
    g.lab("T_q")
    g("s_barrier\nv_mov_b32 v15, 0\nds_read_b32 v14, v15 offset:65024\ns_waitcnt lgkmcnt(0)\nv_readfirstlane_b32 s25, v14\ns_cmp_ge_u32 s25, 256\ns_cbranch_scc1 L_F")
    g("s_and_b32 s26, s25, 31\ns_lshr_b32 s29, s25, 5")
    g("v_min_u32 v12, 11, v0"); g.divc(13,14,12,3,15)
    g("v_mul_u32_u24 v13, 6, v13\nv_lshl_add_u32 v13, v14, 1, v13\ns_lshr_b32 s41, s26, 4\nv_add_u32 v13, s41, v13\nv_lshlrev_b32 v13, 7, v13\ns_mov_b32 s41, %d"%B1F)
    wait_flags(g,"T_w",13,"s41","16",11)
    g("s_mul_i32 s30, s26, 196608\ns_mul_i32 s41, s24, 3072\ns_add_u32 s30, s30, s41\ns_add_u32 s30, s30, %d\ns_mov_b32 s31, s41\ns_mov_b32 s36, 0\ns_mov_b32 s37, 0"%KV)
    def dprep(): g("s_min_u32 s41, s36, 15\ns_mul_i32 s41, s41, 12288\ns_add_u32 s41, s41, s30\ns_mul_i32 s42, s37, 12288\ns_add_u32 s42, s42, s31\ns_add_u32 s36, s36, 1\ns_add_u32 s37, s37, 1\ns_cmp_eq_u32 s37, 3\ns_cselect_b32 s37, 0, s37")
    def dma1(): g("s_mov_b32 m0, s42\ns_add_u32 s42, s42, 1024\nbuffer_load_dwordx4 v1, s[4:7], s41 offen sc1 lds\ns_add_u32 s41, s41, 1024")
    dprep(); dma1(); dma1(); dma1()
    g("s_lshl_b32 s43, s29, 3\ns_lshl_b32 s44, s24, 1\ns_add_u32 s43, s43, s44\ns_mul_i32 s44, s43, 1536\ns_mul_i32 s45, s26, 98304\ns_add_u32 s44, s44, s45\ns_add_u32 s44, s44, %d"%QB)
    zero(g,Q+4,4); zero(g,Q+12,4)
    for qt in range(2):
        g("buffer_load_dwordx4 v[%d:%d], v1, s[4:7], s44 offen offset:%d sc1\ns_mov_b32 exec_hi, 0\nbuffer_load_dwordx4 v[%d:%d], v1, s[4:7], s44 offen offset:%d sc1\ns_mov_b32 exec_hi, -1"%(Q+8*qt,Q+8*qt+3,1536*qt,Q+8*qt+4,Q+8*qt+7,1536*qt+1024))
    dprep(); dma1(); dma1(); dma1()
    g("v_and_b32 v5, 31, v0\nv_min_u32 v6, 20, v5\nv_lshlrev_b32 v5, 4, v5\nv_add_u32 v5, 1024, v5\nv_lshrrev_b32 v7, 5, v0\nv_mul_u32_u24 v7, 336, v7\nv_lshl_add_u32 v6, v6, 4, v7\nv_add_u32 v6, 1536, v6")
    g("v_mov_b32 v8, v1\nv_mov_b32 v9, v5\nv_mov_b32 v10, v6\ns_mov_b32 s38, 0\ns_mov_b32 s40, 0\ns_mov_b32 s46, %s"%fb(TH))
    zero(g,O,32); zero(g,P+8,8)
    def rdkv(kt,nxt):
        b=(kt&1)*8; o=(kt%4)*3072; a=11 if nxt else 8
        return [lambda: g.rd128(KF+b,a,o),lambda: g.rd128(KF+b+4,a+1,o),lambda: g.rd128(VF+b,a+2,o),lambda: g.rd128(VF+b+4,a+2,o+672)]
    mf=lambda d,a,b,c: g("v_mfma_f32_32x32x16_bf16 v[%d:%d], v[%d:%d], v[%d:%d], %s"%(d,d+15,a,a+3,b,b+3,c))
    r16=lambda a:"v[%d:%d]"%(a,a+15)
    def tmax(s_,t):
        g("v_max3_f32 v%d, v%d, v%d, v%d\nv_max3_f32 v%d, v%d, v%d, v%d"%(t,s_,s_+1,s_+2,t+1,s_+3,s_+4,s_+5))
        for r in (6,10): g("v_max3_f32 v%d, v%d, v%d, v%d\nv_max3_f32 v%d, v%d, v%d, v%d"%(t,t,s_+r,s_+r+1,t+1,t+1,s_+r+2,s_+r+3))
        g("v_max3_f32 v%d, v%d, v%d, v%d\nv_max_f32 v%d, v%d, v%d"%(t,t,s_+14,s_+15,t,t,t+1))
    def xh(t): g("v_mov_b32 v%d, v%d\nv_permlane32_swap_b32 v%d, v%d\nv_max_f32 v%d, v%d, v%d"%(t+1,t,t,t+1,t,t,t+1))
    g("s_waitcnt vmcnt(3)\ns_barrier")
    for f in rdkv(0,False): f()
    g.dsneed(R('v',KF,8))
    for qt in range(2): mf(S+16*qt,KF,Q+8*qt,"0"); mf(S+16*qt,KF+4,Q+8*qt+4,r16(S+16*qt))
    for qt in range(2):
        tmax(S+16*qt,T); xh(T)
        for r in range(16): g("v_sub_f32 v%d, 0, v%d"%(NM+16*qt+r,T))
    mf(S,KF,Q,r16(NM)); mf(S,KF+4,Q+4,r16(S))
    g.dsall()
    zero(g,VF+8,8); g("s_nop 7")
    g.lab("T_loop"); g.dsq=[]
    rare=[]
    for u in range(8):
        kt=u>>1; qt=u&1; s_=S+16*qt; nq=qt^1
        nkt=kt+qt
        pkt=kt-1+qt
        side=[]
        if u==5:
            g("s_waitcnt vmcnt(0)\ns_barrier"); dprep()
            g("s_add_u32 s38, s38, 1\ns_cmp_eq_u32 s38, 3\ns_cselect_b32 s38, 0, s38\ns_mul_i32 s43, s38, 12288\nv_add_u32 v11, s43, v1\nv_add_u32 v12, s43, v5\nv_add_u32 v13, s43, v6")
        if u in(5,6,7): side.append(dma1)
        kb=KF+(nkt&1)*8; vb=VF+(pkt&1)*8
        if qt==0: kside=rdkv(kt+1,kt==3)[:2];
        else: kside=rdkv(kt+1,kt==3)[2:]
        g.dsneed(R('v',kb,8))
        mf(S+16*nq,kb,Q+8*nq,r16(NM+16*nq))
        tmax(s_,T)
        lr="T_r%d"%u; lb="T_b%d"%u
        g("v_cmp_lt_f32 vcc, s46, v%d\ns_cbranch_vccnz %s"%(T,lr)); g.lab(lb)
        rare.append((lr,lb,qt))
        g.dsneed(R('v',vb,8))
        mf(O+16*nq,vb,P+8*nq,r16(O+16*nq))
        ex=lambda a,b: [g("v_exp_f32 v%d, v%d"%(s_+r,s_+r)) for r in range(a,b)]
        ex(0,3); mf(S+16*nq,kb+4,Q+8*nq+4,r16(S+16*nq))
        ex(3,6); mf(O+16*nq,vb+4,P+8*nq+4,r16(O+16*nq))
        for f in kside: f()
        ex(6,16)
        for f in side: f()
        for r in range(8): g("v_cvt_pk_bf16_f32 v%d, v%d, v%d"%(P+8*qt+r,s_+2*r,s_+2*r+1))
    g("v_mov_b32 v8, v11\nv_mov_b32 v9, v12\nv_mov_b32 v10, v13")
    g.dsall()
    g("s_add_u32 s40, s40, 1\ns_cmp_lt_u32 s40, 16\ns_cbranch_scc1 T_loop")
    mf(O+16,VF+8,P+8,r16(O+16)); mf(O+16,VF+12,P+12,r16(O+16))
    g("s_lshl_b32 s43, s29, 4\ns_lshl_b32 s44, s24, 2\ns_add_u32 s43, s43, s44\ns_mul_i32 s43, s43, 20480\ns_add_u32 s43, s43, %d\ns_add_u32 s44, s43, 40960\ns_mul_i32 s45, s26, 20"%OB)
    g("v_bfe_u32 v12, v0, 4, 1\nv_mul_u32_u24 v12, 20480, v12\nv_lshl_add_u32 v12, v2, 4, v12\nv_lshrrev_b32 v13, 5, v0\nv_lshlrev_b32 v13, 2, v13\nv_add_u32 v13, s45, v13")
    for i in range(3):
        g("v_add_u32 v14, %d, v13\nv_lshrrev_b32 v15, 3, v14\nv_lshl_add_u32 v15, v15, 8, v12\nv_bfe_u32 v14, v14, 2, 1\nv_lshl_add_u32 v%d, v14, 3, v15"%(8*i,8+i))
    for qt in range(2):
        o=O+16*qt
        g("v_mov_b32 v%d, v%d\nv_mov_b32 v%d, v%d\nv_permlane32_swap_b32 v%d, v%d\nv_rcp_f32 v%d, v%d"%(T,o+8,T+1,o+8,T,T+1,T,T+1))
        for r in range(0,12,2): g("v_pk_mul_f32 v[%d:%d], v[%d:%d], v[%d:%d] op_sel_hi:[1,0]"%(o+r,o+r+1,o+r,o+r+1,T,T+1))
        for r in range(6): g("v_cvt_pk_bf16_f32 v%d, v%d, v%d"%(P+8*qt+r,o+2*r,o+2*r+1))
        for i in range(3):
            if i==2: g("s_mov_b32 exec_hi, 0")
            g("buffer_store_dwordx2 v[%d:%d], v%d, s[4:7], s%d offen sc1"%(P+8*qt+2*i,P+8*qt+2*i+1,8+i,43+qt))
        g("s_mov_b32 exec_hi, -1")
    g("s_waitcnt vmcnt(0)\ns_barrier\ns_lshl_b32 s34, s25, 7\ns_add_u32 s34, s34, %d"%TF); flag_store(g,"1","s34")
    g("s_branch T_next")
    for (lr,lb,qt) in rare:
        g.lab(lr)
        xh(T); g("v_max_f32 v%d, 0, v%d\nv_sub_f32 v%d, 0, v%d\nv_exp_f32 v%d, v%d"%(T,T,T+2,T,T+2,T+2))
        for r in range(16): g("v_sub_f32 v%d, v%d, v%d\nv_sub_f32 v%d, v%d, v%d\nv_mul_f32 v%d, v%d, v%d"%(S+16*qt+r,S+16*qt+r,T,NM+16*qt+r,NM+16*qt+r,T,O+16*qt+r,O+16*qt+r,T+2))
        g("s_branch %s"%lb)

def role_f(g,opt):
    WF=lambda n,t: ('a',(n*5+t)*4)
    UXR=lambda t,h: ('a',100+(t*8+h)*4) if t*8+h<39 else ('v',236)
    OF=16; PXR=16; PM=80; UM=96; AA=136; AB=176; GG=216; F=16
    g.lab("L_F"); g.ts(4)
    g("s_sub_u32 s25, s25, 256\ns_cmp_ge_u32 s25, 128\ns_cbranch_scc1 L_fin\ns_and_b32 s26, s25, 7\ns_lshr_b32 s29, s25, 3")
    g("s_mul_i32 s30, s26, 160\ns_mul_i32 s31, s24, %d"%(160*1280))
    load5(g,P_BWO,640*1280,1280,"s30","s31",5,WF,25600)
    g.srd2(16,P_OUT,2621440)
    g("v_min_u32 v13, 39, v0\nv_lshlrev_b32 v13, 7, v13\ns_mov_b32 s41, %d"%RF); wait_flags(g,"F_g",13,"s41","0",12)
    g("v_min_u32 v12, 23, v0\ns_lshl_b32 s41, s24, 4\nv_add_u32 v13, s41, v12\ns_lshl_b32 s41, s24, 3\ns_add_u32 s41, s41, 48\nv_add_u32 v14, s41, v12\nv_cmp_gt_u32 vcc, 16, v12\nv_cndmask_b32 v6, v14, v13, vcc\nv_lshlrev_b32 v6, 7, v6")
    g("v_and_b32 v7, 7, v0\ns_lshl_b32 s41, s24, 3\ns_add_u32 s41, s41, 32\nv_add_u32 v7, s41, v7\nv_lshlrev_b32 v7, 7, v7\nv_and_b32 v8, 31, v0\nv_lshlrev_b32 v8, 7, v8")
    g("v_mul_u32_u24 v9, 2560, v3\nv_lshl_add_u32 v9, v2, 4, v9\nv_lshlrev_b32 v10, 3, v2\ns_mul_i32 s41, s24, 10240\nv_add_u32 v4, s41, v1")
    for rd,(sh,msk,add) in enumerate(((3,7,0),(1,1,8))):
        g("v_lshrrev_b32 v12, %d, v0\nv_and_b32 v12, 7, v12\ns_lshl_b32 s41, s24, 3\nv_add_u32 v12, s41, v12\nv_and_b32 v13, %d, v0\nv_add_u32 v13, %d, v13"%(sh,msk,add))
        g("v_mul_u32_u24 v14, 1280, v12\nv_lshl_add_u32 v%d, v13, 4, v14"%(232+rd))
        g("v_lshrrev_b32 v14, 4, v12\nv_mul_u32_u24 v14, 5120, v14\nv_and_b32 v12, 15, v12\nv_lshl_add_u32 v14, v12, 4, v14\nv_lshl_add_u32 v%d, v13, 9, v14"%(234+rd))
    g("s_mov_b32 s40, s29")
    g.lab("F_loop")
    g("s_lshr_b32 s41, s40, 3\ns_lshl_b32 s41, s41, 12\ns_add_u32 s41, s41, %d"%TF); wait_flags(g,"F_t",8,"s41","1",13)
    g("s_and_b32 s41, s40, 1\ns_lshl_b32 s41, s41, 13\ns_add_u32 s41, s41, %d\ns_lshr_b32 s42, s40, 1\ns_add_u32 s42, s42, 1"%XF); wait_flags(g,"F_x",7,"s41","s42",14)
    g("s_mul_i32 s41, s40, 40960\ns_mul_i32 s42, s24, 5120\ns_add_u32 s41, s41, s42\ns_add_u32 s41, s41, %d"%OB)
    for rt in range(2):
        for n in range(5): g("buffer_load_dwordx4 v[%d:%d], v1, s[4:7], s41 offen sc1\ns_add_u32 s41, s41, %d"%(OF+(rt*5+n)*4,OF+(rt*5+n)*4+3,1024 if n<4 else 20480-4096))
    g("s_lshl_b32 s41, s40, 8\ns_add_u32 s41, s41, %d\nbuffer_load_dwordx2 v[%d:%d], v10, s[4:7], s41 offen sc1\nbuffer_load_dwordx2 v[%d:%d], v10, s[4:7], s41 offen offset:128 sc1"%(G,GG,GG+1,GG+2,GG+3))
    g("s_mul_i32 s41, s40, 40\ns_mul_i32 s42, s26, 5\ns_add_u32 s43, s41, s42\ns_lshl_b32 s41, s43, 15\ns_lshl_b32 s42, s24, 13\ns_add_u32 s41, s41, s42\ns_add_u32 s41, s41, %d"%UX)
    for t in range(5):
        for h in range(8):
            g("buffer_load_dwordx4 %s, v1, s[4:7], s41 offen offset:%d sc1"%(rs(UXR(t,h)),(h%4)*1024))
            if h%4==3: g("s_add_u32 s41, s41, %d"%(4096 if h==3 else 32768-4096))
    g("s_waitcnt vmcnt(42)")
    m=lambda d,a,b,first: g("v_mfma_f32_16x16x32_bf16 v[%d:%d], %s, v[%d:%d], %s"%(d,d+3,rs(a),b,b+3,"0" if first else "v[%d:%d]"%(d,d+3)))
    for n in range(5):
        for t in range(5):
            for rt in range(2): m(AB+(t*2+rt)*4,WF(n,t),OF+(rt*5+n)*4,n==0)
    g("s_add_u32 s42, s40, 1\ns_mov_b32 s41, %d"%AF); wait_flags(g,"F_a",6,"s41","s42",15)
    g("s_lshl_b32 s41, s40, 5\ns_lshl_b32 s42, s24, 3\ns_add_u32 s41, s41, s42\ns_mul_i32 s41, s41, 2560\ns_add_u32 s41, s41, %d\ns_mov_b32 s44, s41"%PX)
    for h in range(8):
        for rt in range(2): g("buffer_load_dwordx4 v[%d:%d], v1, s[4:7], s41 offen offset:%d sc1"%(PXR+(h*2+rt)*4,PXR+(h*2+rt)*4+3,rt*1280))
        g("s_add_u32 s41, s41, 2560")
    for z in range(2):
        for rt in range(2): g("buffer_load_dwordx4 v[%d:%d], v9, s[4:7], s44 offen offset:%d sc1"%(PM+(z*2+rt)*4,PM+(z*2+rt)*4+3,1024+rt*1280))
        g("s_add_u32 s44, s44, 10240")
    g("s_lshl_b32 s41, s43, 13\ns_lshl_b32 s42, s24, 11\ns_add_u32 s41, s41, s42\ns_add_u32 s41, s41, %d"%UMP)
    for t in range(5):
        for z in range(2): g("buffer_load_dwordx4 v[%d:%d], v1, s[4:7], s41 offen offset:%d sc1"%(UM+(t*2+z)*4,UM+(t*2+z)*4+3,z*1024))
        g("s_add_u32 s41, s41, 8192")
    for h in range(8):
        g("s_waitcnt vmcnt(%d)"%(28-2*h))
        for t in range(5):
            for rt in range(2): m(AA+(t*2+rt)*4,UXR(t,h),PXR+(h*2+rt)*4,h==0)
    for t in range(5):
        g("s_waitcnt vmcnt(%d)"%(8-2*t))
        for z in range(2):
            for rt in range(2): m(AA+(t*2+rt)*4,('v',UM+(t*2+z)*4),PM+(z*2+rt)*4,False)
    g("s_barrier")
    for t in range(5):
        for rt in range(2):
            a=AA+(t*2+rt)*4; b=AB+(t*2+rt)*4; gg=GG+2*rt
            for r in (0,2):
                g("v_pk_mul_f32 v[%d:%d], v[%d:%d], v[%d:%d] op_sel:[0,1]\nv_pk_fma_f32 v[%d:%d], v[%d:%d], v[%d:%d], v[%d:%d] op_sel_hi:[1,0,1]"%(b+r,b+r+1,b+r,b+r+1,gg,gg+1,a+r,a+r+1,a+r,a+r+1,gg,gg+1,b+r,b+r+1))
            g.ds("ds_write_b128 v4, v[%d:%d] offset:%d"%(a,a+3,(rt*5+t)*1024))
    g.dsall(); g("s_barrier")
    g("s_mul_i32 s41, s40, 40960\ns_mul_i32 s42, s26, 160\ns_add_u32 s41, s41, s42")
    for rd in range(2):
        b=F+rd*40
        for w in range(4):
            for z in range(2): g.rd128(b+8*w+4*z,234+rd,w*10240+z*256)
    for rd in range(2):
        b=F+rd*40
        for w in range(1,4):
            g.dsneed(R('v',b+8*w,8))
            for r in range(0,8,2): g("v_pk_add_f32 v[%d:%d], v[%d:%d], v[%d:%d]"%(b+r,b+r+1,b+r,b+r+1,b+8*w+r,b+8*w+r+1))
        for r in range(4): g("v_cvt_pk_bf16_f32 v%d, v%d, v%d"%(b+32+r,b+2*r,b+2*r+1))
        if rd==1: g("s_mov_b64 exec, 0xffff")
        g("buffer_store_dwordx4 v[%d:%d], v%d, s[16:19], s41 offen"%(b+32,b+35,232+rd))
    g("s_mov_b64 exec, -1\ns_add_u32 s40, s40, 16\ns_cmp_lt_u32 s40, 64\ns_cbranch_scc1 F_loop")
```

```python
from kb import *
from lay import *
import k as KK
from k import flag_store,load_a,load_b,WA,WV,WOD,P_MEM,P_GW
import math
SC_A=192**-0.5*math.log2(math.e)
import struct
def fb(x): return "0x%08x"%struct.unpack("<I",struct.pack("<f",x))[0]
def wait_c(g,p):
    g("s_mov_b32 s62, 0\nv_mov_b32 v15, %d"%D_C0)
    g.lab(p+"wc"); g.guard(1)
    g("buffer_load_dwordx3 v[12:14], v15, s[20:23], 0 offen sc1\ns_waitcnt vmcnt(0)\nv_readfirstlane_b32 s41, v12\nv_readfirstlane_b32 s42, v13\nv_readfirstlane_b32 s57, v14\ns_and_b32 s43, s41, s42\ns_cmp_eq_u32 s57, 0\ns_cselect_b32 s43, 0, s43\ns_bitcmp1_b32 s43, 8\ns_cbranch_scc0 %swc"%p)
    g("s_and_b32 s41, s41, 7\ns_and_b32 s42, s42, 7")
    for x in range(4): g("s_xor_b32 s%d, s41, %d\ns_lshl_b32 s%d, s%d, 12\ns_xor_b32 s%d, s42, %d\ns_lshl_b32 s%d, s%d, 12"%(52+x,PI8[x],52+x,52+x,44+x,PI8[x],44+x,44+x))
def sel4(g,dst,base,idx):
    g("s_mov_b32 %s, s%d"%(dst,base))
    for x in range(1,4): g("s_cmp_eq_u32 %s, %d\ns_cselect_b32 %s, s%d, %s"%(idx,x,dst,base+x,dst))
def vsel(g,dst,idxv,base,n,tmp,first=0):
    g("v_mov_b32 v%d, s%d"%(dst,base+first))
    for x in range(1,n): g("v_mov_b32 v%d, s%d\nv_cmp_eq_u32 vcc, %d, v%d\nv_cndmask_b32 v%d, v%d, v%d, vcc"%(tmp,base+first+x,x,idxv,dst,dst,tmp))
def comp_s(g,dst,u,t):
    g("s_bfe_u32 %s, %s, 0x10004\ns_lshl_b32 %s, %s, 14\ns_bfe_u32 %s, %s, 0x10005\ns_lshl_b32 %s, %s, 12\ns_xor_b32 %s, %s, %s"%(dst,u,dst,dst,t,u,t,t,dst,dst,t))
def page_s(g,dst,u,near):
    comp_s(g,"s60",u,"s61"); g("s_xor_b32 s60, s60, %s\ns_lshl_b32 %s, %s, 15\ns_add_u32 %s, %s, s60"%(near,dst,u,dst,dst))
def page_v(g,dst,u,nearv,offv):
    comp_s(g,"s60",u,"s61"); g("v_xor_b32 v%d, s60, v%d\ns_lshl_b32 s60, %s, 15\nv_add3_u32 v%d, v%d, s60, v%d"%(dst,nearv,u,dst,dst,offv))
def wait_flags(g,p,voff,soff,need,code):
    g("s_mov_b32 s62, 0\ns_add_u32 s61, s57, %s"%need)
    g.lab(p); g.guard(code)
    g("buffer_load_dword v14, v%d, s[4:7], %s offen sc1\ns_waitcnt vmcnt(0)\nv_subrev_u32 v14, s61, v14\nv_cmp_lt_u32 vcc, 64, v14\ns_cbranch_vccnz %s"%(voff,soff,p))
def slots(g):
    g("s_mov_b32 s41, s36\ns_mov_b32 s36, s37\ns_mov_b32 s37, s38\ns_mov_b32 s38, s41")
def gatherM(g,p,GA,MB,code):
    g("s_mov_b32 s62, 0")
    g.lab(p+"gm"); g.guard(code)
    g("buffer_load_dwordx4 v[%d:%d], v1, s[4:7], s39 offen sc1\nbuffer_load_dwordx4 v[%d:%d], v1, s[4:7], s39 offen offset:1024 sc1\ns_mov_b32 exec_hi, 0\nbuffer_load_dwordx4 v[%d:%d], v1, s[4:7], s39 offen offset:2048 sc1\ns_mov_b32 exec_hi, -1"%(GA,GA+3,GA+4,GA+7,GA+8,GA+11))
    g("s_waitcnt vmcnt(0)\nv_max3_u32 v14, v%d, v%d, v%d\nv_cmp_eq_u32 vcc, -1, v14\ns_cbranch_vccnz %sgm"%(GA,GA+4,GA+8,p))
    g.ds("ds_write_b128 v4, v[%d:%d]"%(GA,GA+3)); g.ds("ds_write_b128 v4, v[%d:%d] offset:1024"%(GA+4,GA+7))
    g("s_mov_b32 exec_hi, 0"); g.ds("ds_write_b128 v4, v[%d:%d] offset:2048"%(GA+8,GA+11)); g("s_mov_b32 exec_hi, -1")
def halfsum(g,a,b):
    for r in range(4): g("v_permlane32_swap_b32 v%d, v%d"%(a+r,b+r))
    for r in range(4): g("v_add_f32 v%d, v%d, v%d"%(a+r,a+r,b+r))
def xred(g,op,v,t):
    g("v_mov_b32 v%d, v%d\nv_permlane32_swap_b32 v%d, v%d\n%s v%d, v%d, v%d\nv_mov_b32 v%d, v%d\nv_permlane16_swap_b32 v%d, v%d\n%s v%d, v%d, v%d"%(t,v,v,t,op,v,v,t,t,v,v,t,op,v,v,t))
def interleave(g,main,side,start=0,every=1):
    side=list(side)
    for i,m in enumerate(main):
        m()
        if i>=start and (i-start)%every==0 and side: side.pop(0)()
    for f in side: f()

def zero(g,a,n):
    for r in range(0,n,2): g("v_mov_b64 v[%d:%d], 0"%(a+r,a+r+1))
def sparse_idx(g): g("v_mov_b32 v7, 0x4444\nv_mov_b32 v12, 0xeeee\nv_cmp_gt_u32 vcc, 8, v2\nv_cndmask_b32 v7, v12, v7, vcc")
def ready_r(g,p):
    g("v_min_u32 v13, 39, v0\nv_lshlrev_b32 v13, 7, v13\ns_mov_b32 s41, %d"%RF); wait_flags(g,p,13,"s41","0",2)

def role_a(g,opt):
    MB=98304; QA=108544; KA=111616; KQ0=114688; KQ1=139264
    MR=16; ACC=32; S=44; KF=56; ST=104; GA=16+0; XF0=104
    g.lab("L_A")
    load_a(g); g.ts(1)
    wait_c(g,"A")
    g("s_and_b32 s41, s27, 3"); sel4(g,"s35",52,"s41")
    sparse_idx(g)
    g("v_mov_b32 v12, 0xf149f2ca\nv_cmp_gt_u32 vcc, 2, v3\nv_cndmask_b32 v6, 0, v12, vcc")
    g("s_mul_i32 s41, s24, 2560\ns_add_u32 s41, s41, %d\nv_add_u32 v4, s41, v1"%MB)
    def paddr(slot):
        g("s_lshl_b32 s41, %s, 3\ns_lshr_b32 s42, s25, 2\ns_add_u32 s41, s41, s42\ns_add_u32 s41, s41, %d"%(slot,PU0))
        comp_s(g,"s42","s41","s43"); g("s_lshl_b32 s41, s41, 15\ns_and_b32 s43, s25, 3\ns_mul_i32 s43, s43, 640\ns_add_u32 s41, s41, s43")
        g("v_and_b32 v12, 7, v2\nv_lshlrev_b32 v12, 4, v12\nv_add_u32 v12, s41, v12\nv_and_b32 v13, 1, v3\nv_lshl_add_u32 v13, v13, 3, v12\nv_add_u32 v13, 512, v13\nv_lshl_add_u32 v12, v3, 7, v12\nv_cmp_gt_u32 vcc, 8, v2")
        for z in range(2):
            g("s_xor_b32 s41, s42, s%d\ns_xor_b32 s43, s42, s%d\nv_mov_b32 v14, s41\nv_mov_b32 v15, s43\nv_cndmask_b32 v14, v15, v14, vcc\nv_add_u32 v%d, v14, v12\nv_add_u32 v%d, v14, v13"%(52+2*z,53+2*z,8+z,10+z))
    def pstore(x,m):
        g("buffer_store_dwordx4 v[%d:%d], v8, s[4:7], 0 offen sc1\nbuffer_store_dwordx4 v[%d:%d], v9, s[4:7], 0 offen sc1\ns_mov_b32 exec_lo, 0"%(x,x+3,x,x+3))
        g("buffer_store_dwordx2 v[%d:%d], v10, s[4:7], 0 offen sc1\nbuffer_store_dwordx2 v[%d:%d], v11, s[4:7], 0 offen sc1\ns_mov_b32 exec_lo, -1"%(m,m+1,m,m+1))
    g("s_lshl_b32 s34, s25, 1\ns_add_u32 s34, s34, s24\ns_sub_u32 s34, s34, 1\ns_lshl_b32 s34, s34, 7\ns_add_u32 s34, s34, %d"%AF)
    for r in range(4): g("v_mov_b32 v%d, -1"%(20+r))
    g("s_min_u32 s50, s24, 2"); paddr("s50"); pstore(20,20)
    g("s_waitcnt vmcnt(0)\ns_barrier\ns_cmp_eq_u32 s24, 0\ns_cbranch_scc1 A_c0\ns_cmp_eq_u32 s24, 3\ns_cbranch_scc1 A_c0"); flag_store(g,"0","s34")
    g.lab("A_c0")
    g("s_mul_i32 s41, s24, 768\ns_add_u32 s41, s41, %d"%QA)
    g("v_lshrrev_b32 v12, 1, v3\nv_mul_u32_u24 v12, 3072, v12\nv_lshl_add_u32 v12, v2, 4, v12\nv_and_b32 v13, 1, v3\nv_lshl_add_u32 v12, v13, 3, v12\nv_add_u32 v120, s41, v12")
    g("v_bfe_u32 v12, v0, 2, 2\nv_lshl_add_u32 v12, v3, 2, v12\nv_lshlrev_b32 v12, 4, v12\nv_and_b32 v13, 1, v0\nv_lshl_add_u32 v12, v13, 3, v12\nv_bfe_u32 v13, v0, 1, 1\nv_mul_u32_u24 v13, 3072, v13\nv_add_u32 v121, v12, v13")
    g("v_add_u32 v121, %d, v121\nv_and_b32 v12, 7, v2\nv_lshlrev_b32 v12, 4, v12\nv_lshl_add_u32 v12, v3, 7, v12\nv_add_u32 v123, %d, v12"%(QA,MB))
    g("s_mov_b32 s36, 2\ns_mov_b32 s37, 0\ns_mov_b32 s38, 1\ns_mov_b32 s40, 0\ns_mov_b32 s48, 0\ns_mov_b32 s49, 0\ns_mov_b32 s30, %s"%fb(SC_A))
    ready_r(g,"A_rr"); g.ts(2)
    def kqpre(p):
        g("s_and_b32 s41, s50, 1\ns_lshr_b32 s42, s50, 1\ns_cmp_eq_u32 s41, 0\ns_cselect_b32 s43, s48, s49\ns_cmp_gt_u32 s43, s42\ns_cbranch_scc1 %sok"%p)
        g("s_lshl_b32 s51, s41, 6\ns_add_u32 s51, s51, s25\ns_lshl_b32 s51, s51, 7\ns_add_u32 s51, s51, %d\nv_mov_b32 v13, 0\ns_add_u32 s42, s42, 1"%XF)
        wait_flags(g,p+"w",13,"s51","s42",3)
        g("v_readfirstlane_b32 s43, v14\ns_add_u32 s43, s43, s42\ns_cmp_eq_u32 s41, 0\ns_cselect_b32 s48, s43, s48\ns_cselect_b32 s49, s49, s43")
        g.lab(p+"ok")
        g("s_lshl_b32 s42, s50, 5\ns_add_u32 s42, s42, s25\ns_mul_i32 s42, s42, 24576\ns_add_u32 s42, s42, %d\ns_mul_i32 s43, s41, 24576\ns_add_u32 s43, s43, %d"%(KQX,KQ0))
        for q in range(24): g("s_mov_b32 m0, s43\ns_add_u32 s43, s43, 1024\nbuffer_load_dwordx4 v1, s[4:7], s42 offen sc1 lds\ns_add_u32 s42, s42, 1024")
    g.pt0()
    g("s_cmp_lg_u32 s24, 3\ns_cbranch_scc1 A_loop\ns_mov_b32 s50, 0"); kqpre("Ak0")
    g.lab("A_loop")
    slots(g)
    g("s_lshl_b32 s41, s36, 2\ns_add_u32 s41, s41, s24"); page_s(g,"s39","s41","s35")
    g("s_and_b32 s41, s40, 1\ns_mul_i32 s41, s41, 24576\ns_add_u32 s41, s41, %d\nv_add_u32 v122, s41, v1"%KQ0)
    g("s_cmp_eq_u32 s24, 3\ns_cselect_b32 s50, s38, s36"); paddr("s50")
    zero(g,ACC,12); zero(g,GA+8,4)
    for r in range(4): g("v_mov_b32 v%d, v6"%(S+r))
    g("s_waitcnt vmcnt(0)\ns_barrier")
    kfr=lambda kt,kp: KF+(kt*6+kp)*4
    for n in range(12): g.rd128(KF+4*n,122,n*1024)
    SG=[104,112,48]; MX=124
    def rdw(rho): return [(lambda c=c: g.rd128(SG[rho%3]+4*c,5,(rho//3)*6144+(rho%3)*2048+c*1024)) for c in range(2)]
    for rho in range(3):
        for f in rdw(rho): f()
    g.pt(0); gatherM(g,"A",GA,MB,4); g.pt(1)
    g.dsall(); g("s_barrier")
    g.pt(2)
    mreg=lambda k2: MX if k2>=16 else MR+4*(k2%4)
    rdm=lambda k2: (lambda: g.rd128(mreg(k2),123,k2*512))
    rdm(0)(); rdm(16)(); rdm(1)(); rdm(2)(); rdm(3)()
    seq=[]
    for G in range(4):
        for q in range(4):
            seq+=[(4*G+q,t) for t in range(3)]
            if q<3: seq.append((16+G,q))
    side=[]
    def needs(k2,t):
        n=R('v',mreg(k2),4)
        if k2>=16: n=n+R('v',SG[(3*(k2-16)+t)%3],8)
        return n
    for i,(k2,t) in enumerate(seq):
        g.dsneed(needs(k2,t))
        w=('v',SG[(3*(k2-16)+t)%3]) if k2>=16 else WA(k2,t)
        g("v_smfmac_f32_16x16x64_bf16 v[%d:%d], v[%d:%d], %s, v7"%(ACC+4*t,ACC+4*t+3,mreg(k2),mreg(k2)+3,rs(w,8)))
        if k2<16 and t==2 and k2+4<16: side.insert(0,rdm(k2+4))
        if k2>=16:
            rho=3*(k2-16)+t
            if t==2 and k2<19: side.insert(0,rdm(k2+1))
            if rho+3<12: side+=rdw(rho+3)
        if side and not (i+1<60 and g.pending(needs(*seq[i+1]))): side.pop(0)()
    assert not side
    for t in range(3):
        a_=ACC+4*t
        g("v_cvt_pk_bf16_f32 v%d, v%d, v%d\nv_cvt_pk_bf16_f32 v%d, v%d, v%d"%(a_,a_,a_+1,a_+1,a_+2,a_+3))
        g.ds("ds_write_b64 v120, v[%d:%d] offset:%d"%(a_,a_+1,t*256))
    g.dsall(); g("s_barrier")
    g.pt(3)
    g("s_cmp_eq_u32 s24, 3\ns_cbranch_scc1 A_w3")
    xfr=lambda kp: [104,108,112,116,124,28][kp]
    for kp in range(6):
        for hf in range(2): g.rdtr(xfr(kp)+hf*2,121,kp*512+hf*256)
    q0=list(g.dsq)
    g("s_cmp_lg_u32 s24, 0\ns_cbranch_scc1 A_w12")
    def softmax(T):
        g("v_max3_f32 v%d, v%d, v%d, v%d\nv_max3_f32 v%d, v%d, v%d, v%d"%(T,S+4,S+5,S+6,T+1,S+7,S+8,S+9))
        g("v_max3_f32 v%d, v%d, v%d, v%d\nv_max3_f32 v%d, v%d, v%d, v%d"%(T,T,S+10,S+11,T+1,T+1,S,S+1))
        g("v_max3_f32 v%d, v%d, v%d, v%d\nv_max_f32 v%d, v%d, v%d"%(T,T,S+2,S+3,T,T,T+1))
        xred(g,"v_max_f32",T,T+1)
        g("v_mul_f32 v%d, s30, v%d"%(T,T))
        for r in range(0,12,2): g("v_pk_fma_f32 v[%d:%d], v[%d:%d], s[30:31], v[%d:%d] op_sel_hi:[1,0,0] neg_lo:[0,0,1] neg_hi:[0,0,1]"%(S+r,S+r+1,S+r,S+r+1,T,T+1))
        for r in range(12): g("v_exp_f32 v%d, v%d"%(S+r,S+r))
        pk=lambda d,a,b: g("v_pk_add_f32 v[%d:%d], v[%d:%d], v[%d:%d]"%(d,d+1,a,a+1,b,b+1))
        pk(T,S,S+2); pk(T+2,S+4,S+6); pk(T,T,S+8); pk(T+2,T+2,S+10); pk(T,T,T+2); g("v_add_f32 v%d, v%d, v%d"%(T,T,T+1))
        xred(g,"v_add_f32",T,T+1)
        g("v_rcp_f32 v%d, v%d"%(T,T))
        for r in (4,6,8,10,0,2): g("v_pk_mul_f32 v[%d:%d], v[%d:%d], v[%d:%d] op_sel_hi:[1,0]"%(S+r,S+r+1,S+r,S+r+1,T,T+1))
        for r in range(4): g("v_cvt_pk_bf16_f32 v%d, v%d, v%d"%(T+4+r,S+4+2*r,S+5+2*r))
        for r in range(2): g("v_cvt_pk_bf16_f32 v%d, v%d, v%d"%(T+8+r,S+2*r,S+1+2*r))
    def smf(B,first):
        for kp in range(6):
            g.dsneed(R('v',xfr(kp),4)+R('v',B(kp),4))
            for tl in ((1,2,0) if kp<5 else (1,2,0)):
                A=xfr(kp) if tl==0 else kfr(tl-1,kp)
                c=first(tl) if kp==0 else "v[%d:%d]"%(S+4*tl,S+4*tl+3)
                g("v_mfma_f32_16x16x32_bf16 v[%d:%d], v[%d:%d], v[%d:%d], %s"%(S+4*tl,S+4*tl+3,A,A+3,B(kp),B(kp)+3,c))
    smf(xfr,lambda tl:"v[%d:%d]"%(S,S+3) if tl==0 else "0")
    T=56
    softmax(T)
    g("v_min_u32 v%d, -2, v%d\nv_min_u32 v%d, -2, v%d"%(T+4,T+4,T+8,T+8))
    for r in (5,6,7,4,9,8): g("v_mov_b32_dpp v%d, v%d row_ror:8 row_mask:0xf bank_mask:0xc"%(T+r,T+r))
    pstore(T+4,T+8)
    g("s_branch A_next")
    g.lab("A_w12"); g.dsq=q0
    qfr=lambda kp: (16+kp*4) if kp<3 else (ACC+(kp-3)*4)
    g("s_sub_u32 s41, s24, 1\ns_mul_i32 s42, s41, 6144\ns_add_u32 s42, s42, 12288\nv_add_u32 v13, s42, v122")
    for kp in range(6): g.rd128(qfr(kp),13,kp*1024)
    flag_store(g,"s40","s34")
    g("v_mov_b32 v12, 0xf149f2ca\ns_lshl_b32 s41, s41, 4\nv_lshlrev_b32 v14, 2, v3\nv_sub_u32 v14, v2, v14\nv_add_u32 v14, s41, v14")
    for kt in range(2):
        for r in range(4): g("v_cmp_gt_i32 vcc, %d, v14\nv_cndmask_b32 v%d, 0, v12, vcc"%(16*kt+r,S+4+4*kt+r))
    smf(qfr,lambda tl:"v[%d:%d]"%(S+4*tl,S+4*tl+3))
    T=56
    softmax(T)
    g("s_lshl_b32 s41, s40, 5\ns_add_u32 s41, s41, s25\ns_lshl_b32 s41, s41, 1\ns_add_u32 s41, s41, s24\ns_sub_u32 s41, s41, 1\ns_mul_i32 s41, s41, 1280\ns_add_u32 s41, s41, %d"%PX)
    g("v_lshlrev_b32 v12, 4, v2\nv_and_b32 v13, 1, v3\nv_lshl_add_u32 v12, v13, 3, v12")
    g("buffer_store_dwordx4 v[%d:%d], v1, s[4:7], s41 offen sc1\ns_mov_b32 exec_lo, 0\nbuffer_store_dwordx2 v[%d:%d], v12, s[4:7], s41 offen offset:1024 sc1\ns_mov_b32 exec_lo, -1"%(T+4,T+7,T+8,T+9))
    g("s_branch A_next")
    g.lab("A_w3"); g.dsq=[]
    for r in range(4): g("v_mov_b32 v%d, -1"%(20+r))
    pstore(20,20)
    g("s_add_u32 s50, s40, 1\ns_cmp_ge_u32 s50, 64\ns_cbranch_scc1 A_next"); kqpre("Ak1")
    g.lab("A_next"); g.dsq=[]; g.pt(4)
    g("s_add_u32 s40, s40, 1\ns_cmp_lt_u32 s40, %d\ns_cbranch_scc1 A_loop"%g.NS)
    g("s_waitcnt vmcnt(0)\ns_cmp_eq_u32 s24, 0\ns_cbranch_scc1 L_fin\ns_cmp_eq_u32 s24, 3\ns_cbranch_scc1 L_fin"); flag_store(g,"s40","s34")
    g("s_branch L_fin")

def role_b(g,opt):
    MB=81920; VA=MB+10240
    M0=16; GA=16; AV=56; AU=68; VF=16; PA=108
    STG=[88,96,40]
    g.lab("L_B")
    pos=load_b(g); g.ts(1)
    wait_c(g,"B")
    g("s_and_b32 s41, s27, 3"); sel4(g,"s35",52,"s41"); sel4(g,"s33",44,"s24")
    sparse_idx(g)
    g("s_mul_i32 s41, s24, 2560\ns_add_u32 s41, s41, %d\nv_add_u32 v4, s41, v1"%MB)
    def uaddr(slot,d):
        g("s_mul_i32 s41, %s, 20\ns_lshr_b32 s42, s25, 4\ns_add_u32 s41, s41, s42\ns_and_b32 s42, s25, 15\ns_lshl_b32 s42, s42, 8\nv_lshlrev_b32 v15, 4, v2\nv_add_u32 v15, s42, v15"%slot)
        for q in range(3):
            g("v_lshrrev_b32 v12, 1, v3")
            if q<2: g("v_and_b32 v13, 1, v3\nv_lshl_or_b32 v12, v13, 1, v12")
            g("v_add_u32 v12, %d, v12\nv_lshl_add_u32 v12, v12, 1, s41"%(4*q))
            g("v_bfe_u32 v13, v12, 4, 1\nv_lshlrev_b32 v13, 14, v13\nv_bfe_u32 v14, v12, 5, 1\nv_lshlrev_b32 v14, 12, v14\nv_xor_b32 v13, v13, v14\nv_xor_b32 v13, s33, v13\nv_lshlrev_b32 v12, 15, v12\nv_add3_u32 v%d, v12, v13, v15"%(d+q))
    def uclear(slot):
        uaddr(slot,16)
        for r in range(4): g("v_mov_b32 v%d, -1"%(20+r))
        for q in range(3): g("buffer_store_dwordx4 v[20:23], v%d, s[4:7], s32 offen sc1"%(16+q))
    g("s_mov_b32 s32, %d"%RING1)
    g("s_lshl_b32 s34, s25, 7\ns_add_u32 s34, s34, %d"%BF)
    for sl in range(3): g("s_mov_b32 s43, %d"%sl); uclear("s43")
    g("s_waitcnt vmcnt(0)\ns_barrier"); flag_store(g,"0","s34")
    g("s_mul_i32 s41, s24, 10\nv_lshrrev_b32 v12, 1, v3\nv_and_b32 v13, 1, v3\nv_lshl_or_b32 v13, v13, 1, v12\nv_add_u32 v13, s41, v13\nv_lshlrev_b32 v13, 13, v13\ns_lshl_b32 s42, s25, 8\nv_lshlrev_b32 v14, 4, v2\nv_add3_u32 v10, v13, v14, s42")
    g("s_add_u32 s41, s41, 8\nv_add_u32 v12, s41, v12\nv_lshlrev_b32 v12, 13, v12\nv_add3_u32 v11, v12, v14, s42")
    VW,VR,MR=8,9,6
    g("v_lshrrev_b32 v12, 1, v3\nv_lshl_add_u32 v12, v12, 4, v2\nv_lshlrev_b32 v12, 4, v12\nv_and_b32 v13, 1, v3\nv_lshl_add_u32 v12, v13, 3, v12\ns_mul_i32 s41, s24, 768\ns_add_u32 s41, s41, %d\nv_add_u32 v%d, s41, v12"%(VA,VW))
    g("v_bfe_u32 v12, v0, 2, 2\nv_lshl_add_u32 v12, v3, 3, v12\nv_lshlrev_b32 v12, 4, v12\nv_and_b32 v13, 1, v0\nv_lshl_add_u32 v12, v13, 3, v12\nv_add_u32 v%d, %d, v12\nv_add_u32 v%d, %d, v1"%(VR,VA,MR,MB))
    g("s_mov_b32 s36, 2\ns_mov_b32 s37, 0\ns_mov_b32 s38, 1\ns_mov_b32 s40, 0")
    ready_r(g,"B_rr"); g.ts(2)
    g.pt0()
    g.lab("B_loop")
    slots(g)
    g("s_lshl_b32 s41, s36, 2\ns_add_u32 s41, s41, s24"); page_s(g,"s39","s41","s35")
    uaddr("s36",PA)
    zero(g,GA+8,4); zero(g,AV,12); zero(g,AU,20)
    def rdw(n):
        return [(lambda c=c: g.rd128(STG[n%3]+4*c,5,pos[n%2]+(n//2)*2048+c*1024)) for c in range(2)]
    for f in rdw(0)+rdw(1): f()
    g.pt(0); gatherM(g,"B",GA,MB,5); g.pt(1)
    g.dsall(); g("s_barrier")
    g.pt(2)
    for k in range(10): g.rd128(M0+4*k,MR,k*1024)
    for t in range(3):
        po=[]
        if t==2:
            po=[None]*6+[(lambda r=r: g("v_permlane32_swap_b32 v%d, v%d"%(AV+r,AV+4+r))) for r in range(4)]
        for k in range(10):
            if t==0 and k in(0,1,3,6): g.dsneed(R('v',M0+4*{0:0,1:2,3:5,6:9}[k],4))
            g("v_smfmac_f32_16x16x64_bf16 v[%d:%d], v[%d:%d], %s, v7"%(AV+4*t,AV+4*t+3,M0+4*k,M0+4*k+3,rs(WV(2*k,t),8)))
            if po:
                f=po.pop(0)
                if f: f()
    for r in range(4): g("v_add_f32 v%d, v%d, v%d"%(AV+r,AV+r,AV+4+r))
    g("v_cvt_pk_bf16_f32 v%d, v%d, v%d\nv_cvt_pk_bf16_f32 v%d, v%d, v%d"%(AV+4,AV,AV+1,AV+5,AV+2,AV+3))
    g.ds("ds_write_b64 v%d, v[%d:%d]"%(VW,AV+4,AV+5))
    g("v_mov_b64 v[%d:%d], v[%d:%d]\nv_mov_b64 v[%d:%d], v[%d:%d]"%(AV,AV+1,AV+8,AV+9,AV+2,AV+3,AV+10,AV+11))
    halfsum(g,AV+8,AV); g("v_cvt_pk_bf16_f32 v%d, v%d, v%d\nv_cvt_pk_bf16_f32 v%d, v%d, v%d\ns_mov_b32 exec_hi, 0"%(AV,AV+8,AV+9,AV+1,AV+10,AV+11))
    g.ds("ds_write_b64 v%d, v[%d:%d] offset:512"%(VW,AV,AV+1)); g("s_mov_b32 exec_hi, -1")
    g.dsall(); g("s_barrier")
    g.pt(3)
    for kk in range(6):
        for hf in range(2): g.rdtr(VF+4*kk+2*hf,VR,kk*512+hf*64)
    for f in rdw(2): f()
    PK=[48,52,56]
    def post(q):
        a=AU+8*q; y=a+4 if q<2 else a; d=PK[q]; L=[]
        for dd,x in ((d,a),(d+2,y),(d+1,a+2),(d+3,y+2)): L.append(lambda dd=dd,x=x: g("v_cvt_pk_bf16_f32 v%d, v%d, v%d"%(dd,x,x+1)))
        L.append(lambda: g("v_permlane16_swap_b32 v%d, v%d"%(d,d+2)))
        L.append(lambda: g("v_permlane16_swap_b32 v%d, v%d"%(d+1,d+3)))
        L.append(lambda: g("v_min_u32 v%d, -2, v%d"%(d,d)))
        L.append(lambda: g("buffer_store_dwordx4 v[%d:%d], v%d, s[4:7], s32 offen sc1"%(d,d+3,PA+q)))
        return L
    side=[]; wq=[]
    for pr in range(5):
        if pr in(2,4): side+=post(pr//2-1)
        for kk in (0,1,2,3,4,5):
            need=R('v',VF+4*(kk|1),4) if pr==0 else []
            if kk>=4: n=2*pr+kk-4; w=('v',STG[n%3]); need=need+R('v',w[1],8)
            else: w=WOD(kk,pr)
            nw=len(g.l); g.dsneed(need); waited=len(g.l)>nw
            g("v_smfmac_f32_16x16x64_bf16 v[%d:%d], v[%d:%d], %s, v7"%(AU+4*pr,AU+4*pr+3,VF+4*kk,VF+4*kk+3,rs(w,8)))
            if kk>=4 and n+3<10: wq+=rdw(n+3)
            if wq: wq.pop(0)()
            elif side:
                f=side.pop(0)
                if f: f()
    for f in side+post(2):
        if f: f()
    g.pt(4)
    g("s_mul_i32 s41, s40, 327680\ns_add_u32 s41, s41, %d\ns_add_u32 s42, s41, 32768"%UMP)
    g("buffer_store_dwordx4 v[%d:%d], v10, s[4:7], s41 offen sc1\nbuffer_store_dwordx4 v[%d:%d], v10, s[4:7], s42 offen sc1\nbuffer_store_dwordx4 v[%d:%d], v11, s[4:7], s41 offen sc1"%(PK[0],PK[0]+3,PK[1],PK[1]+3,PK[2],PK[2]+3))
    flag_store(g,"s40","s34")
    uclear("s38")
    g("s_add_u32 s40, s40, 1\ns_cmp_lt_u32 s40, %d\ns_cbranch_scc1 B_loop"%g.NS)
    g("s_waitcnt vmcnt(0)\ns_barrier"); flag_store(g,"s40","s34")
    g("s_branch L_fin")

def role_r(g,opt):
    g.lab("L_R")
    g("s_cmp_ge_u32 s25, 2\ns_cbranch_scc1 R_np")
    g("v_mov_b32 v15, 0\ns_cmp_lg_u32 s25, 0\ns_cbranch_scc1 R_nn\ns_cmp_lg_u32 s24, 0\ns_cbranch_scc1 R_nn")
    g("s_memrealtime s[44:45]\ns_waitcnt lgkmcnt(0)\ns_or_b32 s44, s44, 1\nv_mov_b32 v14, s44\ns_mov_b64 exec, 1\nbuffer_store_dword v14, v15, s[20:23], 0 offen offset:%d sc1\ns_mov_b64 exec, -1"%D_NONCE)
    g.lab("R_nn")
    if opt.get('hostc'): g("s_branch R_np")
    g("s_mul_i32 s30, s25, %d\ns_add_u32 s30, s30, %d\ns_lshl_b32 s42, s24, 7\ns_add_u32 s30, s30, s42"%(RING1+6*32768,PROBEU*32768))
    g("v_mov_b32 v16, -1\nv_lshlrev_b32 v17, 2, v0\nds_write_b32 v17, v16\ns_waitcnt lgkmcnt(0)\ns_barrier\ns_mov_b64 exec, 1\ns_mov_b32 s31, 0")
    g.lab("R_pe")
    g("s_bitcmp1_b32 s24, 0\ns_cselect_b32 s42, -1, 1\ns_mul_i32 s42, s42, s31\ns_lshl_b32 s43, s24, 1\ns_add_u32 s42, s42, s43\ns_and_b32 s42, s42, 7\ns_lshl_b32 s43, s42, 12\ns_add_u32 s41, s30, s43\ns_lshl_b32 s42, s42, 2\nv_mov_b32 v17, s42")
    g("s_memtime s[44:45]\ns_waitcnt lgkmcnt(0)\nbuffer_store_dword v15, v15, s[4:7], s41 offen sc1\ns_waitcnt vmcnt(0)\ns_memtime s[46:47]\ns_waitcnt lgkmcnt(0)\ns_sub_u32 s42, s46, s44\nv_mov_b32 v16, s42\nds_min_u32 v17, v16")
    g("s_add_u32 s31, s31, 1\ns_cmp_lt_u32 s31, %d\ns_cbranch_scc1 R_pe"%int(opt.get('np',12)))
    g("s_waitcnt lgkmcnt(0)\ns_barrier\nds_read_b128 v[16:19], v15\nds_read_b128 v[20:23], v15 offset:16\ns_waitcnt lgkmcnt(0)")
    g("v_add_u32 v24, v16, v17\nv_add_u32 v25, v18, v19\nv_add_u32 v26, v20, v21\nv_add_u32 v27, v22, v23\nv_add_u32 v28, v24, v26\nv_add_u32 v29, v25, v27\nv_cmp_gt_u32 vcc, v28, v29")
    g("v_cndmask_b32 v30, 0, 2, vcc\nv_cndmask_b32 v24, v24, v25, vcc\nv_cndmask_b32 v26, v26, v27, vcc\nv_cndmask_b32 v16, v16, v18, vcc\nv_cndmask_b32 v17, v17, v19, vcc\nv_cndmask_b32 v20, v20, v22, vcc\nv_cndmask_b32 v21, v21, v23, vcc".replace("v_cndmask_b32 v30, 0, 2, vcc","v_cndmask_b32_e64 v30, 0, 2, vcc"))
    g("v_cmp_gt_u32 vcc, v24, v26\nv_cndmask_b32_e64 v31, 0, 4, vcc\nv_cndmask_b32 v16, v16, v20, vcc\nv_cndmask_b32 v17, v17, v21, vcc\nv_cmp_gt_u32 vcc, v16, v17\nv_cndmask_b32_e64 v16, 0, 1, vcc\nv_or3_b32 v16, v16, v30, v31")
    g("s_mov_b32 s42, 0x%x\ns_lshl_b32 s43, s27, 2\ns_lshr_b32 s42, s42, s43\ns_and_b32 s42, s42, 7\ns_xor_b32 s42, s42, 0x%x\nv_xor_b32 v16, s42, v16"%(sum(PI8[x]<<(4*x) for x in range(8)),0x105^int(opt.get('far',0))))
    g("s_lshl_b32 s42, s25, 2\ns_add_u32 s42, s42, %d\ns_cmp_lg_u32 s24, 0\ns_cbranch_scc1 R_pq\nbuffer_store_dword v16, v15, s[20:23], s42 offen sc1"%D_C0)
    g.lab("R_pq"); g("s_mov_b64 exec, -1"); g.ts(1)
    g.lab("R_np")
    g("s_cmp_ge_u32 s25, 32\ns_cbranch_scc1 R_ng")
    g.srd2(12,P_GW,1280)
    g("s_lshl_b32 s41, s25, 2\ns_add_u32 s41, s41, s24\ns_mul_i32 s42, s41, 20480\nv_lshrrev_b32 v12, 2, v0\nv_mul_u32_u24 v12, 1280, v12\nv_and_b32 v13, 3, v0\nv_lshlrev_b32 v13, 4, v13\nv_add_u32 v12, v12, v13\nv_mov_b32 v16, 0\nv_mov_b32 v17, 0\ns_mov_b32 s43, 0xffff0000")
    for k in range(20): g("buffer_load_dwordx4 v[%d:%d], v12, s[8:11], s42 offen offset:%d\nbuffer_load_dwordx4 v[%d:%d], v13, s[12:15], 0 offen offset:%d"%(32+8*k,35+8*k,64*k,36+8*k,39+8*k,64*k))
    for k in range(20):
        g("s_waitcnt vmcnt(%d)"%(38-2*k))
        for d in range(4):
            x=32+8*k+d; w=x+4
            g("v_lshlrev_b32 v18, 16, v%d\nv_lshlrev_b32 v19, 16, v%d\nv_and_b32 v20, s43, v%d\nv_and_b32 v21, s43, v%d\nv_mul_f32 v18, v18, v19\nv_mul_f32 v20, v20, v21\nv_cvt_pk_bf16_f32 v18, v18, v20\nv_lshlrev_b32 v19, 16, v18\nv_and_b32 v20, s43, v18\nv_add_f32 v16, v16, v19\nv_add_f32 v17, v17, v20"%(x,w,x,w))
    g("v_add_f32 v16, v16, v17\nv_add_f32_dpp v16, v16, v16 quad_perm:[1,0,3,2] row_mask:0xf bank_mask:0xf\nv_add_f32_dpp v16, v16, v16 quad_perm:[2,3,0,1] row_mask:0xf bank_mask:0xf")
    g("v_cvt_pk_bf16_f32 v16, v16, v16\nv_lshlrev_b32 v16, 16, v16\nv_mul_f32 v16, %s, v16\nv_exp_f32 v16, v16\nv_add_f32 v16, 1.0, v16\nv_rcp_f32 v16, v16\nv_cvt_pk_bf16_f32 v16, v16, v16\nv_lshlrev_b32 v16, 16, v16\nv_sub_f32 v17, 1.0, v16\nv_cvt_pk_bf16_f32 v17, v17, v17\nv_lshlrev_b32 v17, 16, v17"%fb(-math.log2(math.e)))
    g("s_lshl_b32 s41, s41, 7\ns_add_u32 s41, s41, %d\nv_lshrrev_b32 v12, 2, v0\nv_lshlrev_b32 v12, 3, v12\nbuffer_store_dwordx2 v[16:17], v12, s[4:7], s41 offen sc1"%G)
    g.lab("R_ng")
    wait_c(g,"R")
    g("s_and_b32 s41, s27, 3"); sel4(g,"s35",52,"s41")
    g("s_mul_i32 s30, s25, 205\ns_lshr_b32 s30, s30, 11\ns_mul_i32 s31, s30, 10\ns_sub_u32 s31, s25, s31"); sel4(g,"s33",44,"s30")
    vsel(g,8,3,52,4,13)
    g("s_lshl_b32 s41, s31, 8\nv_lshlrev_b32 v9, 4, v2\nv_add_u32 v9, s41, v9")
    def maddr(slot,d):
        g("s_lshl_b32 s41, %s, 2\ns_add_u32 s41, s41, s30"%slot); page_v(g,d,"s41",8,9)
    g("s_cmp_eq_u32 s24, 3\ns_cbranch_scc1 R_c0"); maddr("s24",16)
    for r in range(4): g("v_mov_b32 v%d, -1"%(20+r))
    g("s_cmp_lg_u32 s24, 0\ns_cbranch_scc1 R_c2")
    g.srd2(12,P_MEM,10240)
    g("v_and_b32 v12, 7, v0\nv_mul_u32_u24 v12, 1280, v12\nv_bfe_u32 v13, v0, 3, 1\nv_lshl_add_u32 v12, v13, 4, v12\ns_lshl_b32 s41, s25, 5\nbuffer_load_dwordx4 v[20:23], v12, s[12:15], s41 offen\ns_waitcnt vmcnt(0)\nv_min_u32 v20, -2, v20")
    g.lab("R_c2"); g("buffer_store_dwordx4 v[20:23], v16, s[4:7], 0 offen sc1")
    g.lab("R_c0"); g("s_waitcnt vmcnt(0)\ns_barrier\ns_lshl_b32 s34, s25, 7\ns_add_u32 s34, s34, %d"%RF); flag_store(g,"0","s34")
    UXF=32; UM=64; PXF=72; PM=88; A0=92; A1=96
    g("v_lshrrev_b32 v12, 3, v2\nv_mul_u32_u24 v12, 640, v12\nv_and_b32 v13, 7, v2\nv_lshlrev_b32 v13, 4, v13\nv_lshl_add_u32 v10, v3, 7, v13\nv_add_u32 v10, v10, v12\nv_mul_u32_u24 v11, 640, v3\nv_add_u32 v11, v11, v13")
    g("v_add_u32 v11, 512, v11\nv_bfe_u32 v12, v0, 3, 1\nv_lshlrev_b32 v12, 9, v12\nv_add_u32 v5, v12, v13\ns_lshl_b32 s41, s24, 10\nv_add_u32 v4, s41, v1")
    g("v_and_b32 v6, 7, v0\ns_lshl_b32 s41, s24, 3\ns_add_u32 s41, s41, 32\nv_add_u32 v6, s41, v6\nv_lshlrev_b32 v6, 7, v6")
    g("s_mov_b32 s36, 2\ns_mov_b32 s37, 0\ns_mov_b32 s38, 1\ns_mov_b32 s40, 0\ns_mov_b32 s48, 0\ns_mov_b32 s49, 0")
    g("v_lshlrev_b32 v13, 8, v0\nv_add_u32 v12, 32, v0\nv_lshlrev_b32 v12, 7, v12\nv_cmp_gt_u32 vcc, 32, v0\nv_cndmask_b32 v13, v12, v13, vcc\ns_mov_b32 s41, %d"%AF)
    assert BF==AF+64*128
    wait_flags(g,"R_ab",13,"s41","0",2); g.ts(2)
    def uxpre(p):
        g("s_and_b32 s41, s50, 1\ns_lshr_b32 s42, s50, 1\ns_cmp_eq_u32 s41, 0\ns_cselect_b32 s43, s48, s49\ns_cmp_gt_u32 s43, s42\ns_cbranch_scc1 %sok"%p)
        g("s_lshl_b32 s51, s41, 13\ns_add_u32 s51, s51, %d\ns_add_u32 s42, s42, 1"%XF)
        wait_flags(g,p+"w",6,"s51","s42",6)
        g("v_min_u32_dpp v14, v14, v14 quad_perm:[1,0,3,2] row_mask:0xf bank_mask:0xf\nv_min_u32_dpp v14, v14, v14 quad_perm:[2,3,0,1] row_mask:0xf bank_mask:0xf\nv_min_u32_dpp v14, v14, v14 row_ror:4 row_mask:0xf bank_mask:0xf\nv_readfirstlane_b32 s43, v14\ns_add_u32 s43, s43, s42")
        g("s_cmp_eq_u32 s41, 0\ns_cselect_b32 s48, s43, s48\ns_cselect_b32 s49, s49, s43")
        g.lab(p+"ok")
        g("s_mul_i32 s42, s50, 40\ns_add_u32 s42, s42, s25\ns_lshl_b32 s42, s42, 15\ns_lshl_b32 s43, s24, 13\ns_add_u32 s42, s42, s43\ns_add_u32 s42, s42, %d\ns_add_u32 s43, s42, 4096"%UX)
        for n in range(8): g("buffer_load_dwordx4 v[%d:%d], v1, s[4:7], s%d offen offset:%d sc1"%(UXF+4*n,UXF+4*n+3,42+n//4,(n%4)*1024))
    g("s_mov_b32 s50, 0"); uxpre("Ru0"); g.pt0()
    g.lab("R_loop")
    slots(g)
    g("s_mul_i32 s41, s36, 20\ns_lshl_b32 s42, s31, 1\ns_add_u32 s41, s41, s42\ns_lshr_b32 s42, s24, 1\ns_add_u32 s41, s41, s42"); page_s(g,"s39","s41","s33")
    g("s_and_b32 s41, s24, 1\ns_lshl_b32 s41, s41, 11\ns_add_u32 s39, s39, s41\ns_add_u32 s39, s39, %d"%RING1)
    g("s_lshl_b32 s41, s36, 3\ns_lshl_b32 s42, s24, 1\ns_add_u32 s41, s41, s42\ns_add_u32 s41, s41, %d"%PU0); page_s(g,"s28","s41","s35")
    g("s_add_u32 s41, s41, 1"); page_s(g,"s29","s41","s35")
    g("v_mov_b32 v12, s28\nv_mov_b32 v13, s29\nv_cmp_gt_u32 vcc, 8, v2\nv_cndmask_b32 v12, v13, v12, vcc\nv_add_u32 v7, v12, v11")
    g("s_cmp_eq_u32 s24, 0\ns_cselect_b32 s50, s37, s36"); maddr("s50",16)
    g("s_mov_b32 s62, 0")
    g.pt(0)
    g.lab("R_u"); g.guard(7)
    g("buffer_load_dwordx4 v[%d:%d], v1, s[4:7], s39 offen sc1\nbuffer_load_dwordx4 v[%d:%d], v1, s[4:7], s39 offen offset:1024 sc1\ns_waitcnt vmcnt(0)\nv_max_u32 v14, v%d, v%d\nv_cmp_eq_u32 vcc, -1, v14\ns_cbranch_vccnz R_u"%(UM,UM+3,UM+4,UM+7,UM,UM+4))
    if int(opt.get('pd',0)): g("s_sleep %d"%int(opt['pd']))
    g.pt(1)
    if g.PT: g("s_mov_b32 s62, 0")
    g.lab("R_p");
    for p in range(4): g("buffer_load_dwordx4 v[%d:%d], v10, s[4:7], s%d offen offset:%d sc1"%(PXF+4*p,PXF+4*p+3,28+p//2,(p&1)*1280))
    g("buffer_load_dwordx4 v[%d:%d], v7, s[4:7], 0 offen sc1"%(PM,PM+3))
    g.guard(8)
    for p in range(4):
        g("s_waitcnt vmcnt(%d)"%(4-p))
        for z,a in ((0,A0),(1,A1)):
            g("v_mfma_f32_16x16x32_bf16 v[%d:%d], v[%d:%d], v[%d:%d], %s"%(a,a+3,UXF+4*(2*p+z),UXF+4*(2*p+z)+3,PXF+4*p,PXF+4*p+3,"0" if p==0 else "v[%d:%d]"%(a,a+3)))
    g("v_max3_u32 v14, v%d, v%d, v%d\ns_waitcnt vmcnt(0)"%(PXF,PXF+4,PXF+8))
    for z,a in ((1,A1),(0,A0)): g("v_mfma_f32_16x16x32_bf16 v[%d:%d], v[%d:%d], v[%d:%d], v[%d:%d]"%(a,a+3,UM+4*z,UM+4*z+3,PM,PM+3,a,a+3))
    g("v_max3_u32 v14, v14, v%d, v%d\nv_max_u32 v14, v14, v%d\nv_cmp_eq_u32 vcc, -1, v14\ns_cbranch_vccnz R_p"%(PXF+12,PM,PM+2))
    g.pt(2)
    if g.PT: g("s_add_u32 s97, s97, s62")
    for r in range(4): g("v_add_f32_dpp v%d, v%d, v%d row_ror:8 row_mask:0xf bank_mask:0xf"%(A0+r,A1+r,A0+r))
    g("ds_write_b128 v4, v[%d:%d]\ns_waitcnt lgkmcnt(0)\ns_barrier\ns_cmp_lg_u32 s24, 0\ns_cbranch_scc1 R_n0"%(A0,A0+3))
    F=100
    for w in range(4):
        for z in range(2): g.rd128(F+8*w+4*z,5,w*1024+z*256)
    def padd(d,a,b): g("v_pk_add_f32 v[%d:%d], v[%d:%d], v[%d:%d]"%(d,d+1,a,a+1,b,b+1))
    g.dsneed(R('v',F+8,8))
    for r in range(0,8,2): padd(F+r,F+r,F+8+r)
    g.dsneed(R('v',F+16,8))
    for r in range(0,8,2): padd(F+r,F+r,F+16+r)
    g.dsneed(R('v',F+24,8))
    for r in range(0,8,2): padd(F+r,F+r,F+24+r)
    for r in range(4): g("v_cvt_pk_bf16_f32 v%d, v%d, v%d"%(F+8+r,F+2*r,F+2*r+1))
    g("v_min_u32 v%d, -2, v%d\nbuffer_store_dwordx4 v[%d:%d], v16, s[4:7], 0 offen sc1"%(F+8,F+8,F+8,F+11))
    if opt.get('dump'):
        g("s_mul_i32 s41, s40, 10240\ns_lshl_b32 s42, s25, 8\ns_add_u32 s41, s41, s42\ns_add_u32 s41, s41, %d\nv_lshlrev_b32 v12, 4, v2\nbuffer_store_dwordx4 v[%d:%d], v12, s[4:7], s41 offen sc1"%(DBGW,F+8,F+11))
    g.lab("R_n0"); g.pt(3)
    g("s_cmp_lg_u32 s24, 1\ns_cbranch_scc1 R_n1")
    for r in range(4): g("v_mov_b32 v%d, -1"%(20+r))
    g("buffer_store_dwordx4 v[20:23], v16, s[4:7], 0 offen sc1")
    g.lab("R_n1")
    g("s_add_u32 s40, s40, 1\ns_cmp_ge_u32 s40, %d\ns_cbranch_scc1 L_fin\ns_mov_b32 s50, s40"%(g.NS-1)); uxpre("Ru1")
    g("s_branch R_loop")
```

```python
import re
TRANS=("v_exp_f32","v_log_f32","v_rcp_f32","v_rsq_f32","v_sqrt_f32","v_sin_f32","v_cos_f32","v_rcp_iflag_f32","v_exp_f16","v_rcp_f16")
def regs(tok):
    tok=tok.strip()
    neg=tok.lstrip("-")
    m=re.fullmatch(r"abs\((.*)\)",neg)
    if m: neg=m.group(1)
    neg=neg.strip("|")
    m=re.fullmatch(r"([vas])(\d+)",neg)
    if m: return {(m.group(1),int(m.group(2)))}
    m=re.fullmatch(r"([vas])\[(\d+):(\d+)\]",neg)
    if m: return {(m.group(1),i) for i in range(int(m.group(2)),int(m.group(3))+1)}
    if neg=="vcc": return {("s","vcc_lo"),("s","vcc_hi")}
    if neg in("vcc_lo","vcc_hi"): return {("s",neg)}
    if neg=="exec": return {("x","exec")}
    if neg in("exec_lo","exec_hi"): return {("x","exec")}
    if neg=="m0": return {("m","m0")}
    return set()
class I:
    def __init__(s,text):
        s.text=text; t=text.split(";")[0].strip()
        p=t.split(None,1); s.op=p[0]; rest=p[1] if len(p)>1 else ""
        ops=[];cur="";d=0
        for ch in rest:
            if ch in"[(": d+=1
            if ch in"])": d-=1
            if ch=="," and d==0: ops.append(cur.strip()); cur=""
            else: cur+=ch
        if cur.strip(): ops.append(cur.strip())
        mods=""
        if ops:
            q=ops[-1].split(None,1)
            if len(q)>1 and not ops[-1].startswith("hwreg") : ops[-1]=q[0]; mods=q[1]
        s.ops=ops; s.mods=mods
        op=s.op; R=[regs(o) for o in ops]
        s.w=set(); s.r=set(); s.cls="salu"; s.passes=0; s.C=set(); s.AB=set(); s.stdata=set(); s.dpp=False; s.ws=1; s.sread=set()
        if op.startswith("v_mfma") or op.startswith("v_smfmac"):
            s.cls="mfma"; s.passes=8 if "32x32" in op else 4
            s.w=R[0]
            if op.startswith("v_smfmac"): s.C=R[0]; s.AB=R[1]|R[2]|R[3]
            else: s.C=R[3]; s.AB=R[1]|R[2]
            s.r=s.C|s.AB
        elif op.startswith("v_"):
            s.cls="valu"; base=op.replace("_e32","").replace("_e64","").replace("_dpp","")
            s.base=base
            s.dpp=("_dpp" in op) or ("row_" in mods) or ("quad_perm" in mods)
            if base.startswith("v_permlane") and "swap" in base: s.w=R[0]|R[1]; s.r=R[0]|R[1]
            elif base in("v_add_co_u32","v_sub_co_u32","v_subrev_co_u32","v_addc_co_u32","v_subb_co_u32","v_mad_u64_u32","v_div_scale_f32"):
                s.w=R[0]|R[1]; s.r=set().union(*R[2:])
            elif base=="v_nop": pass
            else:
                s.w=R[0]; s.r=set().union(*R[1:]) if len(R)>1 else set()
                if base.startswith("v_fmac") or base.startswith("v_pk_fmac") or base.startswith("v_dot2c") or s.dpp or base=="v_writelane_b32": s.r|=R[0]
            if base.startswith("v_cmpx"): raise Exception("no cmpx")
        elif op.startswith("ds_"):
            s.cls="ds"
            if op.startswith("ds_read") or op.startswith("ds_bpermute") or op.startswith("ds_swizzle") or "_rtn" in op: s.w=R[0]; s.r=set().union(*R[1:])
            else: s.r=set().union(*R)
        elif op.startswith("buffer_") or op.startswith("global_"):
            s.cls="vmem"
            lds=bool(re.search(r"\blds\b",mods))
            s.lds=lds
            if op in("buffer_wbl2","buffer_inv"): pass
            elif op.startswith("buffer_load") and not lds: s.w=R[0]; s.r=set().union(*R[1:])
            elif op.startswith("global_load") : s.w=R[0]; s.r=set().union(*R[1:])
            else:
                s.r=set().union(*R)
                if "atomic" in op and "sc0" in mods: s.w=R[0]
                if re.search(r"store_dwordx[34]",op): s.stdata=R[0] if op.startswith("buffer") else R[1]
            if lds: s.r|={("m","m0")}
        else:
            if op=="s_nop": s.ws=int(ops[0],0)+1
            elif op.startswith("s_cmp") or op.startswith("s_cbranch") or op in("s_branch","s_waitcnt","s_barrier","s_sleep","s_endpgm","s_setprio","s_setpc_b64"): s.r=set().union(*R) if R else set()
            else:
                s.w=R[0] if R else set(); s.r=set().union(*R[1:]) if len(R)>1 else set()
def need(P,C):
    n=0
    vw={x for x in P.w if x[0] in "va"}; sw={x for x in P.w if x[0]=="s"}
    if P.cls=="valu":
        if C.cls=="mfma" and vw&C.r: n=max(n,2)
        if C.cls=="valu":
            if P.base in TRANS and vw&C.r: n=max(n,1)
            if vw&C.r and (C.dpp or C.base.startswith("v_permlane")): n=max(n,2)
            if vw&C.r and C.base in("v_readlane_b32","v_readfirstlane_b32"): n=max(n,1)
            if sw&C.r: n=max(n,4 if C.base in("v_readlane_b32","v_writelane_b32") else 2)
            if (("op_sel" in P.mods and not P.op.startswith("v_pk_")) or "sdwa" in P.op or "dst_sel" in P.mods) and vw&(C.r|C.w): n=max(n,1)
        if C.cls=="mfma" and sw&C.r: n=max(n,2)
        if C.cls=="vmem" and sw&C.r: n=max(n,5)
    if P.cls=="mfma":
        big=12 if P.passes==8 else 8
        if C.cls=="mfma":
            if P.w&C.AB: n=max(n,big)
            if P.w&C.C and not (P.w==C.C and P.passes==C.passes): n=max(n,big-2)
            if P.w&C.w and not (P.w==C.w): n=max(n,big-2)
        elif C.cls in("valu","ds","vmem"):
            if P.w&(C.r|C.w): n=max(n,big)
            if C.cls=="valu" and P.C&C.w: n=max(n,7 if P.passes==8 else 3)
            if C.cls in("ds","vmem") and P.C&C.w: n=max(n,7 if P.passes==8 else 3)
    if P.cls=="vmem" and P.stdata and (P.stdata&C.w): n=max(n,2 if C.cls in("valu","mfma") else 1)
    if P.cls=="salu" and ("m","m0") in P.w and C.cls=="vmem" and ("m","m0") in C.r: n=max(n,1)
    return n
def process(text,verbose=False):
    lines=text.split("\n")
    items=[]; labels={}
    for li,l in enumerate(lines):
        t=l.split(";")[0].strip()
        if not t or t.startswith("."): continue
        if t.endswith(":"): labels[t[:-1]]=len(items); continue
        items.append((li,I(l)))
    n=len(items)
    preds=[[] for _ in range(n+1)]
    for k,(li,ins) in enumerate(items):
        if ins.op not in("s_branch","s_endpgm","s_setpc_b64"): preds[k+1].append(k)
        if ins.op=="s_branch" or ins.op.startswith("s_cbranch"):
            tgt=labels.get(ins.ops[0])
            if tgt is None: raise Exception("label? "+ins.text)
            preds[tgt].append(k)
    extra=[0]*(n+1); ins_at={}; stats={}
    for k,(li,C) in enumerate(items):
        if C.cls=="salu": continue
        best=0
        stack=[(p,0) for p in preds[k]]; seen={}
        while stack:
            p,d=stack.pop()
            if p in seen and seen[p]<=d: continue
            seen[p]=d
            P=items[p][1]
            nd=need(P,C)
            if nd>d and nd-d>best: best=nd-d; why=P.text
            d2=d+P.ws+extra[p]
            if d2<12:
                for q in preds[p]: stack.append((q,d2))
        if best>0:
            extra[k]=best; ins_at[li]=best
            if verbose and not (" lds" in C.text): print("hz +%d before [%s] due [%s]"%(best,C.text.strip(),why.strip()))
    out=[]
    for li,l in enumerate(lines):
        if li in ins_at: out.append("s_nop %d"%(ins_at[li]-1))
        out.append(l)
    return "\n".join(out)
```

```python
from asmlib import *
class K(E):
    def __init__(s):
        super().__init__(); s.dsq=[]
    def ds(s,text,dst=None):
        s(text); s.dsq.append(set(dst) if dst else set())
    def dsneed(s,regs):
        regs=set(regs); last=-1
        for k,d in enumerate(s.dsq):
            if d&regs: last=k
        if last<0: return
        n=len(s.dsq)-1-last
        if n>15: n=15
        s("s_waitcnt lgkmcnt(%d)"%n); s.dsq=s.dsq[len(s.dsq)-n:] if n else []
    def pending(s,regs):
        regs=set(regs); return any(d&regs for d in s.dsq)
    def dsall(s):
        s("s_waitcnt lgkmcnt(0)"); s.dsq=[]
    def rd128(s,dst,addr,off,pref="v"):
        s.ds("ds_read_b128 %s[%d:%d], v%d offset:%d"%(pref,dst,dst+3,addr,off),[(pref,dst+i) for i in range(4)])
    def rdtr(s,dst,addr,off,pref="v"):
        s.ds("ds_read_b64_tr_b16 %s[%d:%d], v%d offset:%d"%(pref,dst,dst+1,addr,off),[(pref,dst+i) for i in range(2)])
def R(pref,a,n): return [(pref,a+i) for i in range(n)]
def rs(p,n=4): return "%s[%d:%d]"%(p[0],p[1],p[1]+n-1)
```

```python
RING0=0; RING1=0x200000
FL=0x400000
XF=FL
AF=FL+128*128
BF=AF+64*128
RF=BF+32*128
B1F=RF+40*128
TF=B1F+24*128
KQX=0x0500000
UX =0x3500000
UMP=0x8500000
PX =0x9900000
KV =0x9E00000
QB =0xA400000
OB =0xA700000
G  =0xAA00000
DBGW=0xAB00000
D_ARR=0; D_QH=4; D_ERR=8; D_C0=128; D_C1=132; D_NONCE=136
PI8=[7,3,6,2,5,1,4,0]
MU0=0; PU0=12; PROBEU=56
TSB=DBGW+0x200000
ST=0x410000
SA=0x470000
```

```python
import chain,bbranch
def emit(g,opt):
    g.NS=int(opt.get('ns',64))
    chain.role_a(g,opt); chain.role_b(g,opt); chain.role_r(g,opt)
    bbranch.role_b1(g,opt); bbranch.role_t(g,opt); bbranch.role_f(g,opt)
    g.lab("L_fin")
    g.tsdump()
    g("s_endpgm")
```

```python
import sys
from kb import *
from lay import *
import hazard
NAME="gated_mix__memory_aug_recurrent_mem_tr__mha_block__prompt_kernel"
P_X,P_MEM,P_WQ,P_WK,P_WV,P_WO,P_QKV,P_BWO,P_GW,P_OUT,P_DBG,P_WS=64,66,68,70,72,74,80,82,84,86,88,90
WSZ=7864320
SPIN=400000
class G_(K):
    def srd2(s,d,base,nbytes):
        s("s_mov_b32 s%d, s%d\ns_and_b32 s%d, s%d, 0xffff\ns_mov_b32 s%d, 0x%x\ns_mov_b32 s%d, 0x20000"%(d,base,d+1,base+1,d+2,nbytes,d+3))
    TS=False
    def ts(s,i):
        if s.TS: s("s_memrealtime s[58:59]\ns_waitcnt lgkmcnt(0)\ns_mov_b32 s%d, s58"%(92+i)); s.dsq=[]
    PT=False
    def pt(s,i):
        if s.PT: s("s_memtime s[58:59]\ns_waitcnt lgkmcnt(0)\ns_sub_u32 s59, s58, s101\ns_add_u32 s%d, s%d, s59\ns_mov_b32 s101, s58"%(93+i,93+i)); s.dsq=[]
    def pt0(s):
        if s.PT:
            s("s_memtime s[58:59]\ns_waitcnt lgkmcnt(0)\ns_mov_b32 s101, s58")
            for i in range(5): s("s_mov_b32 s%d, 0"%(93+i))
    def tsdump(s):
        if not s.TS: return
        s.ts(7)
        s("s_memtime s[58:59]\ns_waitcnt lgkmcnt(0)\ns_sub_u32 s98, s58, s100")
        L=s.uid("td")
        s("s_cmp_lg_u32 s24, %d\ns_cbranch_scc1 %s"%(s.TW,L))
        for i in range(8): s("v_mov_b32 v%d, s%d"%(16+i,92+i))
        s("s_lshl_b32 s58, s2, 5\ns_add_u32 s58, s58, %d\nv_mov_b32 v15, 0\ns_mov_b64 exec, 1\nbuffer_store_dwordx4 v[16:19], v15, s[4:7], s58 offen\nbuffer_store_dwordx4 v[20:23], v15, s[4:7], s58 offen offset:16\ns_waitcnt vmcnt(0)\ns_mov_b64 exec, -1"%TSB)
        s.lab(L)
    def guard(s,code):
        s("s_add_u32 s62, s62, 1\ns_mov_b32 s63, %d\ns_cmp_gt_u32 s62, %d\ns_cbranch_scc1 L_err"%(code,SPIN))
    def divc(s,q,r,p,c,tmp):
        s("v_mul_u32_u24 v%d, %d, v%d\nv_lshrrev_b32 v%d, 16, v%d\nv_mul_u32_u24 v%d, %d, v%d\nv_sub_u32 v%d, v%d, v%d"%(q,(65536+c-1)//c,p,q,q,tmp,c,q,r,p,tmp))
    def dma_voffs(s,dst,nblk,cpr,rowstride,swbit,colbase_s,t0,perm=False):
        for i in range(nblk):
            s("v_add_u32 v%d, %d, v0"%(t0,64*i))
            s.divc(t0+1,t0+2,t0,cpr,t0+3)
            if swbit is not None:
                s("v_bfe_u32 v%d, v%d, %d, 1\nv_lshlrev_b32 v%d, 1, v%d\nv_xor_b32 v%d, v%d, v%d"%(t0+3,t0+1,swbit,t0+3,t0+3,t0+2,t0+2,t0+3))
            if perm:
                s("v_and_b32 v%d, 17, v%d\nv_bfe_u32 v%d, v%d, 1, 1\nv_lshl_or_b32 v%d, v%d, 3, v%d\nv_bfe_u32 v%d, v%d, 2, 2\nv_lshl_or_b32 v%d, v%d, 1, v%d"%(t0+3,t0+1,t0,t0+1,t0+3,t0,t0+3,t0,t0+1,t0+1,t0,t0+3))
            s("v_mul_u32_u24 v%d, %d, v%d\nv_lshlrev_b32 v%d, 4, v%d\nv_add3_u32 v%d, v%d, v%d, %s"%(t0+1,rowstride,t0+1,t0+2,t0+2,dst+i,t0+1,t0+2,colbase_s))
    def tr_addrs(s,vE,vO,rowstride,gmul,base_s,sw,t0):
        s("v_bfe_u32 v%d, v0, 2, 2\nv_mad_u32_u24 v%d, v3, %d, v%d\nv_mul_u32_u24 v%d, %d, v%d"%(t0,t0,gmul,t0,t0,rowstride,t0))
        s("v_and_b32 v%d, 3, v0\nv_lshlrev_b32 v%d, 3, v%d\nv_add3_u32 v%d, v%d, v%d, %s"%(t0+1,t0+1,t0+1,vE,t0,t0+1,base_s))
        if sw:
            s("v_and_b32 v%d, 1, v3\nv_lshlrev_b32 v%d, 5, v%d\nv_sub_u32 v%d, v%d, v%d\nv_add_u32 v%d, v%d, v%d"%(t0,t0,t0,vO,vE,t0,vE,vE,t0))
    def loader(s,chunks,ring,wb):
        pos=0
        for c in chunks:
            sz=c['nblk']*1024
            if pos+sz>ring: pos=0
            c['pos']=pos; pos+=sz
        issued=0; done=0; outq=[]
        def fits(k):
            a=chunks[k]
            for q in range(done-1 if done>0 and chunks[done-1].get('hold') else done,k):
                b=chunks[q]
                if not (a['pos']+a['nblk']*1024<=b['pos'] or b['pos']+b['nblk']*1024<=a['pos']): return False
            return True
        def issue(k):
            c=chunks[k]
            s("s_add_u32 s60, %s, %d"%(c['soff_s'],c['soff_c']))
            for i in range(c['nblk']):
                s("s_add_u32 m0, %s, %d"%(wb,c['pos']+1024*i))
                s("buffer_load_dwordx4 v%d, s[%d:%d], s60 offen lds"%(c['voff']+i,c['srd'],c['srd']+3))
        while done<len(chunks):
            while issued<len(chunks) and fits(issued) and sum(chunks[q]['nblk'] for q in range(done,issued+1))<=60:
                issue(issued); issued+=1
            c=chunks[done]
            if c.get('res'):
                done+=1; continue
            s("s_waitcnt vmcnt(%d)"%sum(chunks[q]['nblk'] for q in range(done+1,issued)))
            for (pref,reg,av,imm) in c['reads']: s.rdtr(reg,av,imm+c['pos'],pref)
            s.dsall(); done+=1
        s("s_waitcnt vmcnt(0)")
def wreg(idx,nA,vbase):
    return ('a',idx) if idx<256 else ('v',vbase+idx-256)
WQK=lambda k2,t: wreg(((k2>>1)*6+t)*8+(k2&1)*4,256,128)
WV =lambda k2,t: wreg(((k2>>1)*3+t)*8+(k2&1)*4,256,112)
WO =lambda k2,t: wreg(240+((k2>>1)*10+t)*8+(k2&1)*4,256,112)
W5 =lambda k2,t: wreg((k2*5+t)*4,256,112)

def tofrag(g,poss,nt,hfoff):
    g("v_add_u32 v8, s28, v1")
    for p in poss:
        for t in range(nt):
            for hf in range(2): g.rdtr(16+4*t+2*hf,5+(t&1),p+t*32+hf*hfoff)
        g.dsall()
        for t in range(nt): g.ds("ds_write_b128 v8, v[%d:%d] offset:%d"%(16+4*t,19+4*t,p+t*1024))
        g.dsall()
    g("v_mov_b32 v5, v8")
def tofrag8(g,poss,nfr,rd):
    g("v_add_u32 v8, s28, v1")
    for p in poss:
        for t in range(nfr):
            for (ro,av,imm) in rd(p,t): g.rdtr(16+8*t+ro,av,imm)
        g.dsall()
        for t in range(2*nfr): g.ds("ds_write_b128 v8, v[%d:%d] offset:%d"%(16+4*t,19+4*t,p+t*1024))
        g.dsall()
    g("v_mov_b32 v5, v8")
WA =lambda k2,t: wreg((k2*3+t)*8,256,128)
WOD=lambda k2,pr: wreg(240+(k2*5+pr)*8,256,112)
def load_a(g):
    g.srd2(12,P_WQ,WSZ); g.srd2(16,P_WK,WSZ)
    g("s_mul_i32 s28, s24, 24576\ns_mul_i32 s29, s25, 384\ns_mul_i32 s30, s24, 96\ns_add_u32 s29, s29, s30\ns_mov_b32 s30, 0")
    g.dma_voffs(16,3,6,12288,None,"s29",24)
    g("v_bfe_u32 v24, v0, 2, 1\nv_lshl_add_u32 v24, v3, 2, v24\nv_mul_u32_u24 v24, 96, v24\nv_bfe_u32 v25, v0, 3, 1\nv_mul_u32_u24 v25, 3072, v25\nv_and_b32 v26, 3, v0\nv_lshlrev_b32 v26, 3, v26\nv_add3_u32 v5, v24, v25, v26\nv_add_u32 v5, s28, v5")
    rd=lambda p,t:[(2*n,5,p+t*32+(16*(n>>1)+2*(n&1))*96) for n in range(4)]
    ch=[]
    for k2 in range(20):
        ch.append(dict(srd=12,voff=16,nblk=3,soff_s="s30",soff_c=k2*32*12288,reads=[],res=True,hold=True))
        r=[]
        if k2<16:
            for t in range(3):
                p,rg=WA(k2,t); r+=[(p,rg+ro,av,imm-3072) for (ro,av,imm) in rd(0,t)]
        ch.append(dict(srd=16,voff=16,nblk=3,soff_s="s30",soff_c=k2*32*12288,reads=r,res=k2>=16))
    g.loader(ch,24576,"s28")
    assert [c['pos'] for c in ch[32::2]]==[0,6144,12288,18432]
    tofrag8(g,[0,6144,12288,18432],3,rd)
def load_b(g):
    g.srd2(12,P_WV,WSZ); g.srd2(16,P_WO,WSZ)
    g("s_mul_i32 s28, s24, 20480\ns_mul_i32 s29, s25, 384\ns_mul_i32 s30, s24, 96\ns_add_u32 s29, s29, s30\ns_mov_b32 s30, 0")
    g.dma_voffs(16,3,6,12288,None,"s29",32,True)
    g("s_mul_i32 s29, s24, 320")
    g.dma_voffs(20,10,20,1280,None,"s29",32)
    g.tr_addrs(7,None,96,8,"s28",False,32)
    g("v_bfe_u32 v32, v0, 2, 1\nv_lshl_add_u32 v32, v3, 2, v32\nv_mul_u32_u24 v32, 320, v32\nv_bfe_u32 v33, v0, 3, 1\nv_lshlrev_b32 v33, 5, v33\nv_and_b32 v34, 3, v0\nv_lshlrev_b32 v34, 3, v34\nv_add3_u32 v5, v32, v33, v34\nv_add_u32 v5, s28, v5")
    rd=lambda p,pr:[(2*n,5,p+pr*64+(16*(n>>1)+2*(n&1))*320) for n in range(4)]
    g("s_mul_i32 s31, s25, %d"%(192*1280))
    ch=[]
    for k2 in range(20):
        r=[]
        for t in range(3):
            p,rg=WV(k2,t)
            for hf in range(2): r.append((p,rg+2*hf,7,t*32+hf*384))
        ch.append(dict(srd=12,voff=16,nblk=3,soff_s="s30",soff_c=k2*32*12288,reads=r))
    for k2 in range(6):
        r=[]
        if k2<4:
            for pr in range(5):
                p,rg=WOD(k2,pr); r+=[(p,rg+ro,av,imm) for (ro,av,imm) in rd(0,pr)]
        ch.append(dict(srd=16,voff=20,nblk=10,soff_s="s31",soff_c=k2*32*1280,reads=r,res=k2>=4))
    g.loader(ch,20480,"s28")
    pos=[c['pos'] for c in ch[24:]]
    tofrag8(g,pos,5,rd)
    return pos
def get_nonce(g,p):
    g("s_mov_b32 s62, 0\nv_mov_b32 v15, %d"%D_NONCE)
    g.lab(p+"wn"); g.guard(9)
    g("buffer_load_dword v14, v15, s[20:23], 0 offen sc1\ns_waitcnt vmcnt(0)\nv_readfirstlane_b32 s57, v14\ns_cmp_eq_u32 s57, 0\ns_cbranch_scc1 %swn"%p)
def load_qk(g,perm):
    g("s_cmp_lt_u32 s24, 2\ns_cselect_b32 s12, s%d, s%d\ns_cselect_b32 s13, s%d, s%d\ns_and_b32 s13, s13, 0xffff\ns_mov_b32 s14, %d\ns_mov_b32 s15, 0x20000"%(P_WQ,P_WK,P_WQ+1,P_WK+1,WSZ))
    g("s_mul_i32 s28, s24, 24576\ns_mul_i32 s29, s25, 384\ns_and_b32 s30, s24, 1\ns_mul_i32 s30, s30, 192\ns_add_u32 s29, s29, s30\ns_mov_b32 s30, 0")
    g.dma_voffs(16,6,12,12288,3,"s29",24,perm)
    g.tr_addrs(5,6,192,8,"s28",True,24)
    ch=[]
    for k2 in range(20):
        rd=[]
        for t in range(6):
            if k2<16:
                p,r=WQK(k2,t)
                for hf in range(2): rd.append((p,r+2*hf,5+(t&1),t*32+hf*768))
        ch.append(dict(srd=12,voff=16,nblk=6,soff_s="s30",soff_c=k2*32*12288,reads=rd,res=k2>=16))
    g.loader(ch,24576,"s28")
    assert [c['pos'] for c in ch[16:]]==[0,6144,12288,18432]
    tofrag(g,[0,6144,12288,18432],6,768)
def load_vo(g,perm):
    g.srd2(12,P_WV,WSZ); g.srd2(16,P_WO,WSZ)
    g("s_mul_i32 s28, s24, 20480\ns_mul_i32 s29, s25, 384\ns_mul_i32 s30, s24, 96\ns_add_u32 s29, s29, s30\ns_mov_b32 s30, 0")
    g.dma_voffs(16,3,6,12288,None,"s29",32,perm)
    g("s_mul_i32 s29, s24, 320")
    g.dma_voffs(20,10,20,1280,2,"s29",32)
    g.tr_addrs(7,None,96,8,"s28",False,32)
    g.tr_addrs(5,6,320,4,"s28",True,32)
    g("s_mul_i32 s31, s25, %d"%(192*1280))
    ch=[]
    for k2 in range(20):
        rd=[]
        for t in range(3):
            p,r=WV(k2,t)
            for hf in range(2): rd.append((p,r+2*hf,7,t*32+hf*384))
        ch.append(dict(srd=12,voff=16,nblk=3,soff_s="s30",soff_c=k2*32*12288,reads=rd))
    for k2 in range(6):
        rd=[]
        if k2<4:
            for t in range(10):
                p,r=WO(k2,t)
                for hf in range(2): rd.append((p,r+2*hf,5+(t&1),t*32+hf*16*320))
        ch.append(dict(srd=16,voff=20,nblk=10,soff_s="s31",soff_c=k2*32*1280,reads=rd,res=k2>=4))
    g.loader(ch,20480,"s28")
    pos=[c['pos'] for c in ch[24:]]
    tofrag(g,pos,10,16*320)
    return pos

def flag_store(g,val_s,addr_s):
    g("s_add_u32 s61, s57, %s\nv_mov_b32 v14, s61\nv_mov_b32 v15, 0\ns_mov_b64 exec, 1\nbuffer_store_dword v14, v15, s[4:7], %s offen sc1\ns_mov_b64 exec, -1"%(val_s,addr_s))
def arrive(g,lab):
    g("s_cmp_lg_u32 s24, 0\ns_cbranch_scc1 %s\nv_mov_b32 v14, 1\nv_mov_b32 v15, %d\ns_mov_b64 exec, 1\nbuffer_atomic_add v14, v15, s[20:23], 0 offen sc1\ns_mov_b64 exec, -1"%(lab,D_ARR)); g.lab(lab)

def x_addrs(g,nkp):
    g("v_lshrrev_b32 v8, 3, v0\ns_lshl_b32 s35, s24, 3\nv_add_u32 v7, s35, v8\nv_mul_u32_u24 v7, 1280, v7\nv_and_b32 v9, 7, v0\nv_xor_b32 v9, v9, v8\nv_lshl_add_u32 v7, v9, 4, v7")
    g("v_and_b32 v8, 7, v2\nv_xor_b32 v9, v3, v8\nv_lshlrev_b32 v9, 4, v9\nv_lshl_add_u32 v9, v8, 7, v9\nv_lshrrev_b32 v8, 3, v2\nv_mul_u32_u24 v8, %d, v8\nv_add_u32 v10, v8, v9\nv_xor_b32 v11, 64, v10"%(nkp*1024))

def xgemm(g,p,NT,WR,XB,nseg,res,cvt,stores,swap=False,XF_=64,ST=88):
    ACC=16
    x_addrs(g,5)
    def dma_prep():
        g("s_min_u32 s41, s36, %d\ns_lshr_b32 s41, s41, 1\ns_mul_i32 s41, s41, s33\ns_add_u32 s41, s41, s32\ns_mul_i32 s41, s41, 40960\ns_and_b32 s42, s36, 1\ns_mul_i32 s42, s42, 640\ns_add_u32 s41, s41, s42"%(2*nseg-1))
        g("s_mul_i32 s42, s37, 20480\ns_mul_i32 s43, s24, 5120\ns_add_u32 s42, s42, s43\ns_add_u32 s42, s42, %d"%XB)
        g("s_add_u32 s36, s36, 1\ns_add_u32 s37, s37, 1\ns_cmp_eq_u32 s37, 3\ns_cselect_b32 s37, 0, s37")
    def dma1():
        g("s_mov_b32 m0, s42\ns_add_u32 s42, s42, 1024\nbuffer_load_dwordx4 v7, s[8:11], s41 offen lds\ns_add_u32 s41, s41, 128")
    g("s_mov_b32 s36, 0\ns_mov_b32 s37, 0\ns_mov_b32 s39, s32\ns_mov_b32 s40, 0\ns_mov_b32 s44, 0")
    g("s_mov_b32 s48, s4\ns_mov_b32 s49, s5\ns_mov_b32 s50, 0\ns_mov_b32 s51, 0x20000")
    dma_prep()
    for q in range(5): dma1()
    g("s_waitcnt vmcnt(0)\ns_barrier"); dma_prep()
    for q in range(4): dma1()
    g("v_add_u32 v4, %d, v10\nv_add_u32 v12, %d, v11"%(XB,XB))
    def rdx(k2,nxt):
        b=XF_+(k2%2)*8; kl=k2%10
        av=(9 if nxt else 4) if kl%2==0 else 12
        g.rd128(b,av,(kl>>1)*1024); g.rd128(b+4,av,10240+(kl>>1)*1024)
    rdx(0,False)
    g.lab(p+"loop")
    g.dsq=[set(R('v',XF_,4)),set(R('v',XF_+4,4))]
    def rdw(k2,t):
        b=ST+((k2*6+t)%6)*4
        g.rd128(b,5,(k2-16)*6144+t*1024)
    pend=stores("s[48:51]")
    for k2 in range(20):
        kl=k2%10
        if kl==8:
            g("s_waitcnt vmcnt(0)\ns_barrier")
            if k2==8:
                flag_store(g,"s40","s34")
            dma_prep()
            g("s_add_u32 s44, s44, 1\ns_cmp_eq_u32 s44, 3\ns_cselect_b32 s44, 0, s44\ns_mul_i32 s43, s44, 20480\ns_add_u32 s43, s43, %d\nv_add_u32 v9, s43, v10\nv_add_u32 v13, s43, v11"%XB)
        b=XF_+(k2%2)*8
        for t in range(NT):
            if t==1: rdx(k2+1,kl==9)
            if (kl in(8,9) and t in(0,3)) or (kl==0 and t==0): dma1()
            if k2<7 and t in (2,4) and pend and (t==2 or len(pend)>6-k2): pend.pop(0)()
            if res and k2>=15:
                u=k2*6+t+4
                if 96<=u<120: rdw(u//6,u%6)
            if res and k2>=16: w=('v',ST+t*4); g.dsneed(R('v',ST+t*4,4))
            else: w=WR(k2,t)
            for rt in range(2):
                g.dsneed(R('v',b+4*rt,4))
                a=ACC+(t*2+rt)*4
                c="0" if k2==0 else "v[%d:%d]"%(a,a+3)
                A,B=rs(w),"v[%d:%d]"%(b+4*rt,b+4*rt+3)
                if swap: A,B=B,A
                g("v_mfma_f32_16x16x32_bf16 v[%d:%d], %s, %s, %s"%(a,a+3,A,B,c))
            if k2==19 and t>=2: cvt(t-2)
        if kl==9: g("v_mov_b32 v4, v9\nv_mov_b32 v12, v13")
    assert not pend
    cvt(NT-2); cvt(NT-1)
    g("s_add_u32 s40, s40, 1\ns_mov_b32 s47, s39\ns_add_u32 s39, s39, s33\ns_mov_b32 s50, 0x10000000")
    L=g.uid("xe")
    g("s_cmp_eq_u32 s40, 1\ns_cselect_b32 s43, 1, 0\ns_cmp_eq_u32 s40, %d\ns_cselect_b32 s43, 1, s43\ns_cmp_eq_u32 s43, 0\ns_cbranch_scc1 %s"%(nseg,L))
    for f in stores("s[4:7]"): f()
    g("s_mov_b32 s50, 0\ns_waitcnt vmcnt(0)\ns_barrier"); flag_store(g,"s40","s34")
    if g.TS: g("s_mov_b32 s95, s94"); g.ts(2)
    g.lab(L)
    g("s_cmp_lt_u32 s40, %d\ns_cbranch_scc1 %sloop"%(nseg,p))
    g.dsall(); g("s_waitcnt vmcnt(0)")

def role_xqk(g):
    g.lab("L_XQK")
    load_qk(g,False); get_nonce(g,"XQ"); g.ts(1)
    g("s_mov_b32 s32, s26\ns_mov_b32 s33, 2")
    g("s_mul_i32 s45, s25, 24576\ns_add_u32 s45, s45, %d\ns_cmp_lt_u32 s24, 2\ns_cselect_b32 s41, 12288, 0\ns_add_u32 s45, s45, s41\ns_and_b32 s41, s24, 1\ns_mul_i32 s41, s41, 3072\ns_add_u32 s45, s45, s41"%KQX)
    def cvt(t):
        for rt in range(2):
            a=16+(t*2+rt)*4; pk=88+(t>>1)*8+rt*4+(t&1)*2
            if (t&1)==0:
                pass
            g("v_cvt_pk_bf16_f32 v%d, v%d, v%d\nv_cvt_pk_bf16_f32 v%d, v%d, v%d"%(pk,a,a+1,pk+1,a+2,a+3))
    def stores(srd):
        L=[]
        for n,(pr,rt) in enumerate([(pr,rt) for pr in range(3) for rt in range(2)]):
            def f(n=n,pr=pr,rt=rt):
                if n==0: g("s_mul_i32 s52, s47, %d\ns_add_u32 s52, s52, s45\ns_add_u32 s53, s52, 6144"%(32*24576))
                pk=88+pr*8+rt*4
                g("buffer_store_dwordx4 v[%d:%d], v1, %s, s%d offen offset:%d sc1"%(pk,pk+3,srd,52+rt,pr*1024))
            L.append(f)
        return L
    xgemm(g,"XQ",6,WQK,98304,32,True,cvt,stores)
    g("s_branch L_T")

def role_xvo(g):
    g.lab("L_XVO")
    pos=load_vo(g,False); get_nonce(g,"XV"); g.ts(1)
    XB=81920; VB=XB+40960
    g("s_mov_b32 s39, s26\ns_mov_b32 s40, 0")
    x_addrs(g,10)
    def dma_prep(segs): g("s_mul_i32 s41, %s, 40960\ns_mul_i32 s42, s24, 10240\ns_add_u32 s42, s42, %d"%(segs,XB))
    def dma1(): g("s_mov_b32 m0, s42\ns_add_u32 s42, s42, 1024\nbuffer_load_dwordx4 v7, s[8:11], s41 offen lds\ns_add_u32 s41, s41, 128")
    dma_prep("s39")
    for q in range(10): dma1()
    g("v_add_u32 v4, %d, v10\nv_add_u32 v8, %d, v11\nv_add_u32 v9, %d, v1"%(XB,XB,VB))
    for t in range(3):
        g("s_mul_i32 s41, s24, 3\ns_add_u32 s41, s41, %d\ns_lshr_b32 s42, s41, 1\ns_lshl_b32 s42, s42, 10\ns_and_b32 s41, s41, 1\ns_lshl_b32 s41, s41, 3\ns_add_u32 s41, s41, s42\nv_add_u32 v%d, s41, v9"%(t,10+t))
    g("s_mul_i32 s45, s24, %d\ns_lshl_b32 s41, s25, 10\ns_add_u32 s45, s45, s41\ns_add_u32 s45, s45, %d"%(10*32768,UX))
    g("s_waitcnt vmcnt(0)")
    g.lab("XVloop")
    g("s_barrier")
    AV=16; XF_=40; VF=64
    def rdx(k2):
        b=XF_+(k2%3)*8; av=4 if k2%2==0 else 8
        g.rd128(b,av,(k2>>1)*1024); g.rd128(b+4,av,20480+(k2>>1)*1024)
    def vw(t):
        for rt in range(2):
            a=AV+(t*2+rt)*4; pk=64+(t*2+rt)*2
            g("v_cvt_pk_bf16_f32 v%d, v%d, v%d\nv_cvt_pk_bf16_f32 v%d, v%d, v%d"%(pk,a,a+1,pk+1,a+2,a+3))
            g.ds("ds_write_b64 v%d, v[%d:%d] offset:%d"%(10+t,pk,pk+1,rt*6144))
    rdx(0); rdx(1)
    for k2 in range(20):
        b=XF_+(k2%3)*8
        for t in range(3):
            if t==1 and k2+2<20: rdx(k2+2)
            for rt in range(2):
                g.dsneed(R('v',b+4*rt,4))
                a=AV+(t*2+rt)*4
                g("v_mfma_f32_16x16x32_bf16 v[%d:%d], %s, v[%d:%d], %s"%(a,a+3,rs(WV(k2,t)),b+4*rt,b+4*rt+3,"0" if k2==0 else "v[%d:%d]"%(a,a+3)))
    AU=24; PK=16; ST=40
    def rdw(t):
        b=ST+(t%3)*8
        for kk in range(2): g.rd128(b+4*kk,5,pos[kk]+t*1024)
    for t in range(3): vw(t)
    g("s_waitcnt vmcnt(0)"); g.dsall(); g("s_barrier")
    for f in range(12): g.rd128(VF+((f%2)*6+f//2)*4,9,((f%2)*6+f//2)*1024)
    rdw(0); rdw(1)
    flag_store(g,"s40","s34")
    g("s_add_u32 s46, s39, 2\ns_min_u32 s46, s46, 63"); dma_prep("s46")
    g("s_mul_i32 s43, s39, %d\ns_add_u32 s43, s43, s45"%(40*32768))
    def epi(t):
        a=AU+(t%2)*8; pk=PK+(t%2)*4
        g("v_cvt_pk_bf16_f32 v%d, v%d, v%d\nv_cvt_pk_bf16_f32 v%d, v%d, v%d\nv_cvt_pk_bf16_f32 v%d, v%d, v%d\nv_cvt_pk_bf16_f32 v%d, v%d, v%d"%(pk,a,a+1,pk+1,a+2,a+3,pk+2,a+4,a+5,pk+3,a+6,a+7))
    def est(t):
        pk=PK+(t%2)*4
        g("buffer_store_dwordx4 v[%d:%d], v1, s[4:7], s43 offen sc1\ns_add_u32 s43, s43, 32768"%(pk,pk+3))
    for t in range(10):
        a=AU+(t%2)*8
        for k2 in range(6):
            if k2==1 and t+2<10: rdw(t+2)
            if k2 in (2,4) and t<5: dma1()
            if k2==3 and t>0: epi(t-1)
            if k2==5 and t>0: est(t-1)
            if k2>=4: w=('v',ST+(t%3)*8+(k2-4)*4); g.dsneed(R('v',w[1],4))
            else: w=WO(k2,t)
            for rt in range(2):
                vf=VF+(rt*6+k2)*4; g.dsneed(R('v',vf,4))
                g("v_mfma_f32_16x16x32_bf16 v[%d:%d], v[%d:%d], %s, %s"%(a+4*rt,a+4*rt+3,vf,vf+3,rs(w),"0" if k2==0 else "v[%d:%d]"%(a+4*rt,a+4*rt+3)))
    epi(9); est(9)
    g("s_add_u32 s40, s40, 1\ns_add_u32 s39, s39, 2")
    L=g.uid("xe")
    g("s_cmp_eq_u32 s40, 1\ns_cselect_b32 s41, 1, 0\ns_cmp_eq_u32 s40, 32\ns_cselect_b32 s41, 1, s41\ns_cmp_eq_u32 s41, 0\ns_cbranch_scc1 %s"%L)
    g("s_waitcnt vmcnt(0)\ns_barrier"); flag_store(g,"s40","s34")
    if g.TS: g("s_mov_b32 s95, s94"); g.ts(2)
    g.lab(L)
    g("s_waitcnt vmcnt(6)\ns_cmp_lt_u32 s40, 32\ns_cbranch_scc1 XVloop")
    g("s_waitcnt vmcnt(0)\ns_branch L_T")

def entry(g,opt):
    g("; @launch kernel=%s grid=(256,1,1) block=(256,1,1) lds=163840"%NAME if False else "; @launch grid=(256,1,1) block=(256,1,1) lds=163840")
    if opt.get('note',1): g("; opts "+" ".join(sorted(opt)))
    g('.amdgcn_target "amdgcn-amd-amdhsa--gfx950"\n.text\n.globl %s\n.p2align 8\n.type %s,@function'%(NAME,NAME))
    g.lab(NAME)
    g("s_cmp_ge_u32 s2, 256\ns_cbranch_scc1 L_end")
    g("s_load_dwordx16 s[64:79], s[0:1], 0\ns_load_dwordx8 s[80:87], s[0:1], 64\ns_load_dwordx4 s[88:91], s[0:1], 96")
    g("v_lshrrev_b32 v1, 6, v0\nv_and_b32 v0, 63, v0\nv_readfirstlane_b32 s24, v1\nv_lshlrev_b32 v1, 4, v0\nv_and_b32 v2, 15, v0\nv_lshrrev_b32 v3, 4, v0")
    g("s_getreg_b32 s27, hwreg(HW_REG_XCC_ID)\ns_and_b32 s27, s27, 7\ns_mov_b32 s62, 0")
    g("s_waitcnt lgkmcnt(0)")
    if g.TS:
        for i in range(8): g("s_mov_b32 s%d, 0"%(92+i))
    g.ts(0)
    if g.TS: g("s_memtime s[58:59]\ns_waitcnt lgkmcnt(0)\ns_mov_b32 s100, s58")
    g.srd2(4,P_WS,0x10000000); g.srd2(8,P_X,2621440); g.srd2(20,P_DBG,256)
    g.srd2(12,P_WQ,WSZ); g.srd2(16,P_WO,WSZ)
    if opt.get('spread'): g("s_bfe_u32 s28, s2, 0x30001\ns_and_b32 s29, s2, 1\ns_lshr_b32 s30, s2, 4\ns_lshl_b32 s30, s30, 1\ns_or_b32 s29, s29, s30\ns_lshr_b32 s30, s2, 3\ns_and_b32 s30, s30, 1\ns_lshl_b32 s30, s30, 2\ns_bfe_u32 s28, s2, 0x20001\ns_or_b32 s28, s28, s30")
    else: g("s_and_b32 s28, s2, 7\ns_lshr_b32 s29, s2, 3")
    g("s_cmp_ge_u32 s28, 4\ns_cbranch_scc1 L_X")
    g("s_lshl_b32 s25, s28, 3\ns_add_u32 s25, s25, s29\ns_cmp_lt_u32 s29, 8\ns_cbranch_scc1 L_A")
    g("s_sub_u32 s25, s25, 8\ns_cmp_lt_u32 s29, 16\ns_cbranch_scc1 L_B")
    g("s_mul_i32 s25, s28, 10\ns_add_u32 s25, s25, s29\ns_sub_u32 s25, s25, 16\ns_cmp_lt_u32 s29, 26\ns_cbranch_scc1 L_R")
    g("s_mul_i32 s25, s28, 6\ns_add_u32 s25, s25, s29\ns_sub_u32 s25, s25, 26\ns_branch L_B1")
    g.lab("L_X")
    g("s_sub_u32 s25, s28, 4\ns_lshl_b32 s25, s25, 3\ns_and_b32 s30, s29, 7\ns_add_u32 s25, s25, s30\ns_lshr_b32 s26, s29, 4")
    g("s_lshr_b32 s30, s29, 3\ns_lshl_b32 s30, s30, 5\ns_add_u32 s34, s30, s25\ns_lshl_b32 s34, s34, 7\ns_add_u32 s34, s34, %d"%XF)
    g("s_bitcmp1_b32 s29, 3\ns_cbranch_scc1 L_XVO\ns_branch L_XQK")
def tail(g):
    g.lab("L_err")
    g("v_mov_b32 v14, s63\nv_mov_b32 v15, %d\ns_mov_b64 exec, 1\nbuffer_store_dword v14, v15, s[20:23], 0 offen sc1\ns_waitcnt vmcnt(0)"%D_ERR)
    g.lab("L_end"); g("s_endpgm")
    g(kdesc(NAME,512,102,256))
def build(opt):
    g=G_(); g.TS=bool(int(opt.get('ts',0))); g.PT='pt' in opt; g.TW=int(opt.get('pt',0))
    entry(g,opt)
    role_xqk(g); role_xvo(g)
    import roles2
    roles2.emit(g,opt)
    tail(g)
    t=g.text()
    def region(t,a,b,f):
        L=t.split("\n"); i=L.index(a); j=[k for k,l in enumerate(L) if l.startswith(b)][0]
        return "\n".join(L[:i]+[l for l in L[i:j] if f(l)]+L[j:])
    xe=opt.get('xe','')
    for a,b in (("XQloop:","s_cbranch_scc1 XQloop"),("XVloop:","s_cbranch_scc1 XVloop")):
        if 'b' in xe: t=region(t,a,b,lambda l: not l.startswith("s_barrier"))
        if 'd' in xe: t=region(t,a,b,lambda l: not l.endswith("lds"))
        if 'r' in xe: t=region(t,a,b,lambda l: not l.startswith("ds_read_b128"))
        if 't' in xe: t=region(t,a,b,lambda l: not l.startswith("ds_read_b64_tr"))
        if 'w' in xe: t=region(t,a,b,lambda l: not l.startswith("s_waitcnt lgkm"))
    if opt.get('xst')=='plain': t="\n".join(l.replace(" sc1","") if l.startswith("buffer_store_dwordx4") else l for l in t.split("\n"))
    if opt.get('xst')=='none': t="\n".join(l for l in t.split("\n") if not (l.startswith("buffer_store_dwordx4") and "sc1" in l))
    if opt.get('xst')=='nt': t="\n".join(l.replace(" sc1"," sc1 nt") if l.startswith("buffer_store_dwordx4") else l for l in t.split("\n"))
    return hazard.process(t,opt.get('v'))
if __name__=="__main__":
    opt=dict(a.split("=") for a in sys.argv[2:])
    open(sys.argv[1],"w").write(build(opt))
```

```python
from kb import *
from lay import *
from k import flag_store,get_nonce,xgemm,W5,wreg,P_QKV,P_BWO,P_OUT
from chain import wait_flags,fb,zero
import math
SC_B=20**-0.5*math.log2(math.e)
def load5(g,ptr,nbytes,rowstride,col_s,row0_s,k2s,WR,ring):
    g.srd2(12,ptr,nbytes)
    g("s_mul_i32 s28, s24, %d"%ring)
    g.dma_voffs(16,5,10,rowstride,None,col_s,24)
    g.tr_addrs(5,None,160,8,"s28",False,24)
    ch=[]
    for n in range(k2s):
        rd=[]
        for t in range(5):
            p,r=WR(n,t)
            for hf in range(2): rd.append((p,r+2*hf,5,t*32+hf*640))
        ch.append(dict(srd=12,voff=16,nblk=5,soff_s=row0_s,soff_c=n*32*rowstride,reads=rd))
    g.loader(ch,ring,"s28")
def role_b1(g,opt):
    g.lab("L_B1")
    get_nonce(g,"B1")
    g("s_mul_i32 s29, s25, 43\ns_lshr_b32 s29, s29, 8\ns_mul_i32 s26, s29, 6\ns_sub_u32 s26, s25, s26")
    g("s_lshl_b32 s41, s29, 3\nv_and_b32 v12, 7, v0\nv_add_u32 v12, s41, v12\nv_lshlrev_b32 v13, 8, v12\nv_add_u32 v12, 64, v12\nv_lshlrev_b32 v12, 7, v12\nv_cmp_gt_u32 vcc, 8, v0\nv_cndmask_b32 v13, v12, v13, vcc\ns_mov_b32 s41, %d"%AF); wait_flags(g,"B1_w",13,"s41","0",10)
    g("s_mul_i32 s30, s26, 640\ns_mul_i32 s31, s24, 160\ns_add_u32 s30, s30, s31\ns_mov_b32 s31, 0")
    load5(g,P_QKV,640*3840,3840,"s30","s31",20,W5,20480); g.ts(1)
    g("s_lshl_b32 s32, s29, 4\ns_mov_b32 s33, 1\ns_lshl_b32 s34, s25, 7\ns_add_u32 s34, s34, %d"%B1F)
    g("s_and_b32 s41, s26, 1\ns_lshl_b32 s41, s41, 4\ns_lshl_b32 s42, s24, 2\ns_add_u32 s41, s41, s42\ns_mov_b32 s55, 196608\ns_mov_b32 s56, 3072\ns_mov_b32 s45, %d\ns_mov_b32 s54, 1.0"%KV)
    g("s_cmp_ge_u32 s26, 2\ns_cbranch_scc1 B1_a\ns_mov_b32 s55, 98304\ns_mov_b32 s56, 1536\ns_mov_b32 s45, %d\ns_mov_b32 s54, %s"%(QB,fb(SC_B)))
    g.lab("B1_a")
    g("s_mul_i32 s41, s41, s55\ns_add_u32 s45, s45, s41\ns_cmp_ge_u32 s26, 4\ns_cbranch_scc1 B1_v")
    PK=72; AD=96; GA_=102
    IMG=0
    def common():
        g("s_mul_i32 s29, s24, 20480\nv_add_u32 v108, s29, v1")
        for n in range(6):
            g("v_add_u32 v12, %d, v0"%(64*n)); g.divc(13,14,12,96,15)
            g("v_mul_lo_u32 v13, v13, s55\nv_lshl_add_u32 v%d, v14, 4, v13"%(GA_+n))
    def fill(val):
        for r in range(4): g("v_mov_b32 v%d, %s"%(PK+r,val))
        for n in range(6): g.ds("ds_write_b128 v108, v[%d:%d] offset:%d"%(PK,PK+3,n*1024))
        g.dsall()
    def mk(scale,rtoff,p,swap):
        def cvt(t):
            for rt in range(2):
                a=16+(t*2+rt)*4; pk=PK+(t*2+rt)*2
                if scale: g("v_pk_mul_f32 v[%d:%d], v[%d:%d], s[54:55] op_sel_hi:[1,0]\nv_pk_mul_f32 v[%d:%d], v[%d:%d], s[54:55] op_sel_hi:[1,0]"%(a,a+1,a,a+1,a+2,a+3,a+2,a+3))
                g("v_cvt_pk_bf16_f32 v%d, v%d, v%d\nv_cvt_pk_bf16_f32 v%d, v%d, v%d"%(pk,a,a+1,pk+1,a+2,a+3))
                g.ds("ds_write_b64 v%d, v[%d:%d] offset:%d"%(AD+t,pk,pk+1,rt*rtoff))
            if t==4:
                for n in range(6): g.rd128(PK+4*n,108,n*1024)
                g.dsall()
        def stores(srd):
            L=[]
            for n in range(6):
                def f(n=n):
                    if n==0: g("s_mul_i32 s52, s47, s56\ns_add_u32 s52, s52, s45")
                    g("buffer_store_dwordx4 v[%d:%d], v%d, %s, s52 offen sc1"%(PK+4*n,PK+4*n+3,GA_+n,srd))
                L.append(f)
            return L
        xgemm(g,p,5,W5,98304,16,False,cvt,stores,lambda:None,swap,56)
        g("s_branch L_T")
    common(); fill("0")
    for t in range(5):
        g("v_add_u32 v12, %d, v3"%(4*t)); g.divc(13,14,12,5,15)
        g("v_mul_u32_u24 v13, 1536, v13\nv_lshrrev_b32 v15, 1, v14\nv_lshlrev_b32 v15, 9, v15\nv_and_b32 v14, 1, v14\nv_lshl_add_u32 v14, v14, 3, v15\nv_lshl_add_u32 v14, v2, 4, v14\nv_add3_u32 v%d, v13, v14, s29"%(AD+t))
    mk(True,256,"B1q",False)
    g.lab("B1_v")
    g("s_add_u32 s45, s45, 1536")
    common(); fill("0x3f803f80")
    for t in range(5):
        g("v_add_u32 v12, %d, v2"%(16*t)); g.divc(13,14,12,20,15)
        g("v_mul_u32_u24 v13, 1536, v13\nv_lshl_add_u32 v13, v14, 4, v13\nv_and_b32 v14, 1, v3\nv_mul_u32_u24 v14, 336, v14\nv_lshrrev_b32 v15, 1, v3\nv_lshl_add_u32 v14, v15, 3, v14\nv_add3_u32 v%d, v13, v14, s29"%(AD+t))
    mk(False,672,"B1v",True)

def role_t(g,opt):
    Q=16; NM=32; O=64; S=96; P=128; KF=144; VF=160; T=176
    TH=8.0
    g.lab("L_T"); g.ts(3)
    g.lab("T_next")
    g("s_barrier\ns_cmp_lg_u32 s24, 0\ns_cbranch_scc1 T_q\nv_mov_b32 v14, 1\nv_mov_b32 v15, %d\ns_mov_b64 exec, 1\nbuffer_atomic_add v14, v15, s[20:23], 0 offen sc0 sc1\ns_waitcnt vmcnt(0)\nv_mov_b32 v15, 0\nds_write_b32 v15, v14 offset:65024\ns_waitcnt lgkmcnt(0)\ns_mov_b64 exec, -1"%D_QH)
    g.lab("T_q")
    g("s_barrier\nv_mov_b32 v15, 0\nds_read_b32 v14, v15 offset:65024\ns_waitcnt lgkmcnt(0)\nv_readfirstlane_b32 s25, v14\ns_cmp_ge_u32 s25, 256\ns_cbranch_scc1 L_F")
    g("s_and_b32 s26, s25, 31\ns_lshr_b32 s29, s25, 5")
    g("v_min_u32 v12, 11, v0"); g.divc(13,14,12,3,15)
    g("v_mul_u32_u24 v13, 6, v13\nv_lshl_add_u32 v13, v14, 1, v13\ns_lshr_b32 s41, s26, 4\nv_add_u32 v13, s41, v13\nv_lshlrev_b32 v13, 7, v13\ns_mov_b32 s41, %d"%B1F)
    wait_flags(g,"T_w",13,"s41","16",11)
    g("s_mul_i32 s30, s26, 196608\ns_mul_i32 s41, s24, 3072\ns_add_u32 s30, s30, s41\ns_add_u32 s30, s30, %d\ns_mov_b32 s31, s41\ns_mov_b32 s36, 0\ns_mov_b32 s37, 0"%KV)
    def dprep(): g("s_min_u32 s41, s36, 15\ns_mul_i32 s41, s41, 12288\ns_add_u32 s41, s41, s30\ns_mul_i32 s42, s37, 12288\ns_add_u32 s42, s42, s31\ns_add_u32 s36, s36, 1\ns_add_u32 s37, s37, 1\ns_cmp_eq_u32 s37, 3\ns_cselect_b32 s37, 0, s37")
    def dma1(): g("s_mov_b32 m0, s42\ns_add_u32 s42, s42, 1024\nbuffer_load_dwordx4 v1, s[4:7], s41 offen sc1 lds\ns_add_u32 s41, s41, 1024")
    dprep(); dma1(); dma1(); dma1()
    g("s_lshl_b32 s43, s29, 3\ns_lshl_b32 s44, s24, 1\ns_add_u32 s43, s43, s44\ns_mul_i32 s44, s43, 1536\ns_mul_i32 s45, s26, 98304\ns_add_u32 s44, s44, s45\ns_add_u32 s44, s44, %d"%QB)
    zero(g,Q+4,4); zero(g,Q+12,4)
    for qt in range(2):
        g("buffer_load_dwordx4 v[%d:%d], v1, s[4:7], s44 offen offset:%d sc1\ns_mov_b32 exec_hi, 0\nbuffer_load_dwordx4 v[%d:%d], v1, s[4:7], s44 offen offset:%d sc1\ns_mov_b32 exec_hi, -1"%(Q+8*qt,Q+8*qt+3,1536*qt,Q+8*qt+4,Q+8*qt+7,1536*qt+1024))
    dprep(); dma1(); dma1(); dma1()
    g("v_and_b32 v5, 31, v0\nv_min_u32 v6, 20, v5\nv_lshlrev_b32 v5, 4, v5\nv_add_u32 v5, 1024, v5\nv_lshrrev_b32 v7, 5, v0\nv_mul_u32_u24 v7, 336, v7\nv_lshl_add_u32 v6, v6, 4, v7\nv_add_u32 v6, 1536, v6")
    g("v_mov_b32 v8, v1\nv_mov_b32 v9, v5\nv_mov_b32 v10, v6\ns_mov_b32 s38, 0\ns_mov_b32 s40, 0\ns_mov_b32 s46, %s"%fb(TH))
    zero(g,O,32); zero(g,P+8,8)
    def rdkv(kt,nxt):
        b=(kt&1)*8; o=(kt%4)*3072; a=11 if nxt else 8
        return [lambda: g.rd128(KF+b,a,o),lambda: g.rd128(KF+b+4,a+1,o),lambda: g.rd128(VF+b,a+2,o),lambda: g.rd128(VF+b+4,a+2,o+672)]
    mf=lambda d,a,b,c: g("v_mfma_f32_32x32x16_bf16 v[%d:%d], v[%d:%d], v[%d:%d], %s"%(d,d+15,a,a+3,b,b+3,c))
    r16=lambda a:"v[%d:%d]"%(a,a+15)
    def tmax(s_,t):
        g("v_max3_f32 v%d, v%d, v%d, v%d\nv_max3_f32 v%d, v%d, v%d, v%d"%(t,s_,s_+1,s_+2,t+1,s_+3,s_+4,s_+5))
        for r in (6,10): g("v_max3_f32 v%d, v%d, v%d, v%d\nv_max3_f32 v%d, v%d, v%d, v%d"%(t,t,s_+r,s_+r+1,t+1,t+1,s_+r+2,s_+r+3))
        g("v_max3_f32 v%d, v%d, v%d, v%d\nv_max_f32 v%d, v%d, v%d"%(t,t,s_+14,s_+15,t,t,t+1))
    def xh(t): g("v_mov_b32 v%d, v%d\nv_permlane32_swap_b32 v%d, v%d\nv_max_f32 v%d, v%d, v%d"%(t+1,t,t,t+1,t,t,t+1))
    g("s_waitcnt vmcnt(3)\ns_barrier")
    for f in rdkv(0,False): f()
    g.dsneed(R('v',KF,8))
    for qt in range(2): mf(S+16*qt,KF,Q+8*qt,"0"); mf(S+16*qt,KF+4,Q+8*qt+4,r16(S+16*qt))
    for qt in range(2):
        tmax(S+16*qt,T); xh(T)
        for r in range(16): g("v_sub_f32 v%d, 0, v%d"%(NM+16*qt+r,T))
    mf(S,KF,Q,r16(NM)); mf(S,KF+4,Q+4,r16(S))
    g.dsall()
    zero(g,VF+8,8); g("s_nop 7")
    g.lab("T_loop"); g.dsq=[]
    rare=[]
    for u in range(8):
        kt=u>>1; qt=u&1; s_=S+16*qt; nq=qt^1
        nkt=kt+qt
        pkt=kt-1+qt
        side=[]
        if u==5:
            g("s_waitcnt vmcnt(0)\ns_barrier"); dprep()
            g("s_add_u32 s38, s38, 1\ns_cmp_eq_u32 s38, 3\ns_cselect_b32 s38, 0, s38\ns_mul_i32 s43, s38, 12288\nv_add_u32 v11, s43, v1\nv_add_u32 v12, s43, v5\nv_add_u32 v13, s43, v6")
        if u in(5,6,7): side.append(dma1)
        kb=KF+(nkt&1)*8; vb=VF+(pkt&1)*8
        if qt==0: kside=rdkv(kt+1,kt==3)[:2];
        else: kside=rdkv(kt+1,kt==3)[2:]
        g.dsneed(R('v',kb,8))
        mf(S+16*nq,kb,Q+8*nq,r16(NM+16*nq))
        tmax(s_,T)
        lr="T_r%d"%u; lb="T_b%d"%u
        g("v_cmp_lt_f32 vcc, s46, v%d\ns_cbranch_vccnz %s"%(T,lr)); g.lab(lb)
        rare.append((lr,lb,qt))
        g.dsneed(R('v',vb,8))
        mf(O+16*nq,vb,P+8*nq,r16(O+16*nq))
        ex=lambda a,b: [g("v_exp_f32 v%d, v%d"%(s_+r,s_+r)) for r in range(a,b)]
        ex(0,3); mf(S+16*nq,kb+4,Q+8*nq+4,r16(S+16*nq))
        ex(3,6); mf(O+16*nq,vb+4,P+8*nq+4,r16(O+16*nq))
        for f in kside: f()
        ex(6,16)
        for f in side: f()
        for r in range(8): g("v_cvt_pk_bf16_f32 v%d, v%d, v%d"%(P+8*qt+r,s_+2*r,s_+2*r+1))
    g("v_mov_b32 v8, v11\nv_mov_b32 v9, v12\nv_mov_b32 v10, v13")
    g.dsall()
    g("s_add_u32 s40, s40, 1\ns_cmp_lt_u32 s40, 16\ns_cbranch_scc1 T_loop")
    mf(O+16,VF+8,P+8,r16(O+16)); mf(O+16,VF+12,P+12,r16(O+16))
    g("s_lshl_b32 s43, s29, 4\ns_lshl_b32 s44, s24, 2\ns_add_u32 s43, s43, s44\ns_mul_i32 s43, s43, 20480\ns_add_u32 s43, s43, %d\ns_add_u32 s44, s43, 40960\ns_mul_i32 s45, s26, 20"%OB)
    g("v_bfe_u32 v12, v0, 4, 1\nv_mul_u32_u24 v12, 20480, v12\nv_lshl_add_u32 v12, v2, 4, v12\nv_lshrrev_b32 v13, 5, v0\nv_lshlrev_b32 v13, 2, v13\nv_add_u32 v13, s45, v13")
    for i in range(3):
        g("v_add_u32 v14, %d, v13\nv_lshrrev_b32 v15, 3, v14\nv_lshl_add_u32 v15, v15, 8, v12\nv_bfe_u32 v14, v14, 2, 1\nv_lshl_add_u32 v%d, v14, 3, v15"%(8*i,8+i))
    for qt in range(2):
        o=O+16*qt
        g("v_mov_b32 v%d, v%d\nv_mov_b32 v%d, v%d\nv_permlane32_swap_b32 v%d, v%d\nv_rcp_f32 v%d, v%d"%(T,o+8,T+1,o+8,T,T+1,T,T+1))
        for r in range(0,12,2): g("v_pk_mul_f32 v[%d:%d], v[%d:%d], v[%d:%d] op_sel_hi:[1,0]"%(o+r,o+r+1,o+r,o+r+1,T,T+1))
        for r in range(6): g("v_cvt_pk_bf16_f32 v%d, v%d, v%d"%(P+8*qt+r,o+2*r,o+2*r+1))
        for i in range(3):
            if i==2: g("s_mov_b32 exec_hi, 0")
            g("buffer_store_dwordx2 v[%d:%d], v%d, s[4:7], s%d offen sc1"%(P+8*qt+2*i,P+8*qt+2*i+1,8+i,43+qt))
        g("s_mov_b32 exec_hi, -1")
    g("s_waitcnt vmcnt(0)\ns_barrier\ns_lshl_b32 s34, s25, 7\ns_add_u32 s34, s34, %d"%TF); flag_store(g,"1","s34")
    g("s_branch T_next")
    for (lr,lb,qt) in rare:
        g.lab(lr)
        xh(T); g("v_max_f32 v%d, 0, v%d\nv_sub_f32 v%d, 0, v%d\nv_exp_f32 v%d, v%d"%(T,T,T+2,T,T+2,T+2))
        for r in range(16): g("v_sub_f32 v%d, v%d, v%d\nv_sub_f32 v%d, v%d, v%d\nv_mul_f32 v%d, v%d, v%d"%(S+16*qt+r,S+16*qt+r,T,NM+16*qt+r,NM+16*qt+r,T,O+16*qt+r,O+16*qt+r,T+2))
        g("s_branch %s"%lb)

def role_f(g,opt):
    WF=lambda n,t: ('a',(n*5+t)*4)
    UXR=lambda t,h: ('a',100+(t*8+h)*4) if t*8+h<39 else ('v',236)
    OF=16; PXR=16; PM=80; UM=96; AA=136; AB=176; GG=216; F=16
    g.lab("L_F"); g.ts(4)
    g("s_and_b32 s41, s2, 7\ns_cmp_lt_u32 s41, 4\ns_cbranch_scc1 L_fin\ns_lshr_b32 s42, s2, 3\ns_and_b32 s26, s42, 7\ns_lshr_b32 s42, s42, 3\ns_sub_u32 s41, s41, 4\ns_lshl_b32 s42, s42, 2\ns_add_u32 s29, s41, s42")
    g("s_mul_i32 s30, s26, 160\ns_mul_i32 s31, s24, %d"%(160*1280))
    load5(g,P_BWO,640*1280,1280,"s30","s31",5,WF,25600)
    g.srd2(16,P_OUT,2621440)
    g("v_min_u32 v13, 39, v0\nv_lshlrev_b32 v13, 7, v13\ns_mov_b32 s41, %d"%RF); wait_flags(g,"F_g",13,"s41","0",12)
    g("v_min_u32 v12, 23, v0\ns_lshl_b32 s41, s24, 4\nv_add_u32 v13, s41, v12\ns_lshl_b32 s41, s24, 3\ns_add_u32 s41, s41, 48\nv_add_u32 v14, s41, v12\nv_cmp_gt_u32 vcc, 16, v12\nv_cndmask_b32 v6, v14, v13, vcc\nv_lshlrev_b32 v6, 7, v6")
    g("v_and_b32 v7, 7, v0\ns_lshl_b32 s41, s24, 3\ns_add_u32 s41, s41, 32\nv_add_u32 v7, s41, v7\nv_lshlrev_b32 v7, 7, v7\nv_and_b32 v8, 31, v0\nv_lshlrev_b32 v8, 7, v8")
    g("v_mul_u32_u24 v9, 2560, v3\nv_lshl_add_u32 v9, v2, 4, v9\nv_lshlrev_b32 v10, 3, v2\ns_mul_i32 s41, s24, 10240\nv_add_u32 v4, s41, v1")
    for rd,(sh,msk,add) in enumerate(((3,7,0),(1,1,8))):
        g("v_lshrrev_b32 v12, %d, v0\nv_and_b32 v12, 7, v12\ns_lshl_b32 s41, s24, 3\nv_add_u32 v12, s41, v12\nv_and_b32 v13, %d, v0\nv_add_u32 v13, %d, v13"%(sh,msk,add))
        g("v_mul_u32_u24 v14, 1280, v12\nv_lshl_add_u32 v%d, v13, 4, v14"%(232+rd))
        g("v_lshrrev_b32 v14, 4, v12\nv_mul_u32_u24 v14, 5120, v14\nv_and_b32 v12, 15, v12\nv_lshl_add_u32 v14, v12, 4, v14\nv_lshl_add_u32 v%d, v13, 9, v14"%(234+rd))
    g("s_mov_b32 s40, s29")
    g.lab("F_loop")
    g("s_lshr_b32 s41, s40, 3\ns_lshl_b32 s41, s41, 12\ns_add_u32 s41, s41, %d"%TF); wait_flags(g,"F_t",8,"s41","1",13)
    g("s_and_b32 s41, s40, 1\ns_lshl_b32 s41, s41, 13\ns_add_u32 s41, s41, %d\ns_lshr_b32 s42, s40, 1\ns_add_u32 s42, s42, 1"%XF); wait_flags(g,"F_x",7,"s41","s42",14)
    g("s_mul_i32 s41, s40, 40960\ns_mul_i32 s42, s24, 5120\ns_add_u32 s41, s41, s42\ns_add_u32 s41, s41, %d"%OB)
    for rt in range(2):
        for n in range(5): g("buffer_load_dwordx4 v[%d:%d], v1, s[4:7], s41 offen sc1\ns_add_u32 s41, s41, %d"%(OF+(rt*5+n)*4,OF+(rt*5+n)*4+3,1024 if n<4 else 20480-4096))
    g("s_lshl_b32 s41, s40, 8\ns_add_u32 s41, s41, %d\nbuffer_load_dwordx2 v[%d:%d], v10, s[4:7], s41 offen sc1\nbuffer_load_dwordx2 v[%d:%d], v10, s[4:7], s41 offen offset:128 sc1"%(G,GG,GG+1,GG+2,GG+3))
    g("s_mul_i32 s41, s40, 40\ns_mul_i32 s42, s26, 5\ns_add_u32 s43, s41, s42\ns_lshl_b32 s41, s43, 15\ns_lshl_b32 s42, s24, 13\ns_add_u32 s41, s41, s42\ns_add_u32 s41, s41, %d"%UX)
    for t in range(5):
        for h in range(8):
            g("buffer_load_dwordx4 %s, v1, s[4:7], s41 offen offset:%d sc1"%(rs(UXR(t,h)),(h%4)*1024))
            if h%4==3: g("s_add_u32 s41, s41, %d"%(4096 if h==3 else 32768-4096))
    g("s_waitcnt vmcnt(42)")
    m=lambda d,a,b,first: g("v_mfma_f32_16x16x32_bf16 v[%d:%d], %s, v[%d:%d], %s"%(d,d+3,rs(a),b,b+3,"0" if first else "v[%d:%d]"%(d,d+3)))
    for n in range(5):
        for t in range(5):
            for rt in range(2): m(AB+(t*2+rt)*4,WF(n,t),OF+(rt*5+n)*4,n==0)
    g("s_add_u32 s42, s40, 1\ns_mov_b32 s41, %d"%AF); wait_flags(g,"F_a",6,"s41","s42",15)
    g("s_lshl_b32 s41, s40, 5\ns_lshl_b32 s42, s24, 3\ns_add_u32 s41, s41, s42\ns_mul_i32 s41, s41, 2560\ns_add_u32 s41, s41, %d\ns_mov_b32 s44, s41"%PX)
    for h in range(8):
        for rt in range(2): g("buffer_load_dwordx4 v[%d:%d], v1, s[4:7], s41 offen offset:%d sc1"%(PXR+(h*2+rt)*4,PXR+(h*2+rt)*4+3,rt*1280))
        g("s_add_u32 s41, s41, 2560")
    for z in range(2):
        for rt in range(2): g("buffer_load_dwordx4 v[%d:%d], v9, s[4:7], s44 offen offset:%d sc1"%(PM+(z*2+rt)*4,PM+(z*2+rt)*4+3,1024+rt*1280))
        g("s_add_u32 s44, s44, 10240")
    g("s_lshl_b32 s41, s43, 13\ns_lshl_b32 s42, s24, 11\ns_add_u32 s41, s41, s42\ns_add_u32 s41, s41, %d"%UMP)
    for t in range(5):
        for z in range(2): g("buffer_load_dwordx4 v[%d:%d], v1, s[4:7], s41 offen offset:%d sc1"%(UM+(t*2+z)*4,UM+(t*2+z)*4+3,z*1024))
        g("s_add_u32 s41, s41, 8192")
    for h in range(8):
        g("s_waitcnt vmcnt(%d)"%(28-2*h))
        for t in range(5):
            for rt in range(2): m(AA+(t*2+rt)*4,UXR(t,h),PXR+(h*2+rt)*4,h==0)
    for t in range(5):
        g("s_waitcnt vmcnt(%d)"%(8-2*t))
        for z in range(2):
            for rt in range(2): m(AA+(t*2+rt)*4,('v',UM+(t*2+z)*4),PM+(z*2+rt)*4,False)
    g("s_barrier")
    for t in range(5):
        for rt in range(2):
            a=AA+(t*2+rt)*4; b=AB+(t*2+rt)*4; gg=GG+2*rt
            for r in (0,2):
                g("v_pk_mul_f32 v[%d:%d], v[%d:%d], v[%d:%d] op_sel:[0,1]\nv_pk_fma_f32 v[%d:%d], v[%d:%d], v[%d:%d], v[%d:%d] op_sel_hi:[1,0,1]"%(b+r,b+r+1,b+r,b+r+1,gg,gg+1,a+r,a+r+1,a+r,a+r+1,gg,gg+1,b+r,b+r+1))
            g.ds("ds_write_b128 v4, v[%d:%d] offset:%d"%(a,a+3,(rt*5+t)*1024))
    g.dsall(); g("s_barrier")
    g("s_mul_i32 s41, s40, 40960\ns_mul_i32 s42, s26, 160\ns_add_u32 s41, s41, s42")
    for rd in range(2):
        b=F+rd*40
        for w in range(4):
            for z in range(2): g.rd128(b+8*w+4*z,234+rd,w*10240+z*256)
    for rd in range(2):
        b=F+rd*40
        for w in range(1,4):
            g.dsneed(R('v',b+8*w,8))
            for r in range(0,8,2): g("v_pk_add_f32 v[%d:%d], v[%d:%d], v[%d:%d]"%(b+r,b+r+1,b+r,b+r+1,b+8*w+r,b+8*w+r+1))
        for r in range(4): g("v_cvt_pk_bf16_f32 v%d, v%d, v%d"%(b+32+r,b+2*r,b+2*r+1))
        if rd==1: g("s_mov_b64 exec, 0xffff")
        g("buffer_store_dwordx4 v[%d:%d], v%d, s[16:19], s41 offen"%(b+32,b+35,232+rd))
    g("s_mov_b64 exec, -1\ns_add_u32 s40, s40, 16\ns_cmp_lt_u32 s40, 64\ns_cbranch_scc1 F_loop")
```

```python
from kb import *
from lay import *
import k as KK
from k import flag_store,load_qk,load_vo,WA,WV,WOD,P_MEM,P_GW
import math
SC_A=192**-0.5*math.log2(math.e)
import struct
def fb(x): return "0x%08x"%struct.unpack("<I",struct.pack("<f",x))[0]
def wait_c(g,p):
    g("s_mov_b32 s62, 0\nv_mov_b32 v15, %d"%D_C0)
    g.lab(p+"wc"); g.guard(1)
    g("buffer_load_dwordx3 v[12:14], v15, s[20:23], 0 offen sc1\ns_waitcnt vmcnt(0)\nv_readfirstlane_b32 s41, v12\nv_readfirstlane_b32 s42, v13\nv_readfirstlane_b32 s57, v14\ns_and_b32 s43, s41, s42\ns_cmp_eq_u32 s57, 0\ns_cselect_b32 s43, 0, s43\ns_bitcmp1_b32 s43, 8\ns_cbranch_scc0 %swc"%p)
    g("s_and_b32 s41, s41, 7\ns_and_b32 s42, s42, 7")
    for x in range(4): g("s_xor_b32 s%d, s41, %d\ns_lshl_b32 s%d, s%d, 12\ns_xor_b32 s%d, s42, %d\ns_lshl_b32 s%d, s%d, 12"%(52+x,PI8[x],52+x,52+x,44+x,PI8[x],44+x,44+x))
def sel4(g,dst,base,idx):
    g("s_mov_b32 %s, s%d"%(dst,base))
    for x in range(1,4): g("s_cmp_eq_u32 %s, %d\ns_cselect_b32 %s, s%d, %s"%(idx,x,dst,base+x,dst))
def vsel(g,dst,idxv,base,n,tmp,first=0):
    g("v_mov_b32 v%d, s%d"%(dst,base+first))
    for x in range(1,n): g("v_mov_b32 v%d, s%d\nv_cmp_eq_u32 vcc, %d, v%d\nv_cndmask_b32 v%d, v%d, v%d, vcc"%(tmp,base+first+x,x,idxv,dst,dst,tmp))
def comp_s(g,dst,u,t):
    g("s_bfe_u32 %s, %s, 0x10004\ns_lshl_b32 %s, %s, 14\ns_bfe_u32 %s, %s, 0x10005\ns_lshl_b32 %s, %s, 12\ns_xor_b32 %s, %s, %s"%(dst,u,dst,dst,t,u,t,t,dst,dst,t))
def page_s(g,dst,u,near):
    comp_s(g,"s60",u,"s61"); g("s_xor_b32 s60, s60, %s\ns_lshl_b32 %s, %s, 15\ns_add_u32 %s, %s, s60"%(near,dst,u,dst,dst))
def page_v(g,dst,u,nearv,offv):
    comp_s(g,"s60",u,"s61"); g("v_xor_b32 v%d, s60, v%d\ns_lshl_b32 s60, %s, 15\nv_add3_u32 v%d, v%d, s60, v%d"%(dst,nearv,u,dst,dst,offv))
def wait_flags(g,p,voff,soff,need,code):
    g("s_mov_b32 s62, 0\ns_add_u32 s61, s57, %s"%need)
    g.lab(p); g.guard(code)
    g("buffer_load_dword v14, v%d, s[4:7], %s offen sc1\ns_waitcnt vmcnt(0)\nv_subrev_u32 v14, s61, v14\nv_cmp_lt_u32 vcc, 64, v14\ns_cbranch_vccnz %s"%(voff,soff,p))
def slots(g):
    g("s_mov_b32 s41, s36\ns_mov_b32 s36, s37\ns_mov_b32 s37, s38\ns_mov_b32 s38, s41")
def gatherM(g,p,GA,MB,code):
    g("s_mov_b32 s62, -1")
    g.lab(p+"gm")
    g("buffer_load_dwordx4 v[%d:%d], v1, s[4:7], s39 offen sc1\nbuffer_load_dwordx4 v[%d:%d], v1, s[4:7], s39 offen offset:1024 sc1\ns_mov_b32 exec_hi, 0\nbuffer_load_dwordx4 v[%d:%d], v1, s[4:7], s39 offen offset:2048 sc1\ns_mov_b32 exec_hi, -1"%(GA,GA+3,GA+4,GA+7,GA+8,GA+11))
    g("s_add_u32 s62, s62, 1"); g.guard(code)
    g("s_waitcnt vmcnt(2)"); g.ds("ds_write_b128 v4, v[%d:%d]"%(GA,GA+3))
    g("s_waitcnt vmcnt(1)"); g.ds("ds_write_b128 v4, v[%d:%d] offset:1024"%(GA+4,GA+7))
    g("s_mov_b32 exec_hi, 0\ns_waitcnt vmcnt(0)"); g.ds("ds_write_b128 v4, v[%d:%d] offset:2048"%(GA+8,GA+11)); g("s_mov_b32 exec_hi, -1")
    g("v_max3_u32 v14, v%d, v%d, v%d\nv_cmp_eq_u32 vcc, -1, v14\ns_cbranch_vccnz %sgm"%(GA,GA+4,GA+8,p))
    if g.TR: g("s_mov_b32 s98, s62")
def halfsum(g,a,b):
    for r in range(4): g("v_permlane32_swap_b32 v%d, v%d"%(a+r,b+r))
    for r in range(4): g("v_add_f32 v%d, v%d, v%d"%(a+r,a+r,b+r))
def xred(g,op,v,t):
    g("v_mov_b32 v%d, v%d\nv_permlane32_swap_b32 v%d, v%d\n%s v%d, v%d, v%d\nv_mov_b32 v%d, v%d\nv_permlane16_swap_b32 v%d, v%d\n%s v%d, v%d, v%d"%(t,v,v,t,op,v,v,t,t,v,v,t,op,v,v,t))
def interleave(g,main,side,start=0,every=1):
    side=list(side)
    for i,m in enumerate(main):
        m()
        if i>=start and (i-start)%every==0 and side: side.pop(0)()
    for f in side: f()

SU=36
def stamps(g,p,sigR,sigA):
    g("s_and_b32 s41, %s, 3\ns_mul_i32 s41, s41, 3\ns_add_u32 s43, s41, %d"%(sigR,SU)); page_s(g,"s41","s43","s35")
    g("s_and_b32 s42, %s, 3\ns_mul_i32 s42, s42, 3\ns_add_u32 s43, s42, %d"%(sigA,SU+2)); page_s(g,"s42","s43","s35")
    g("v_min_u32 v12, 39, v0\nv_lshrrev_b32 v13, 5, v12\nv_mul_u32_u24 v13, 28672, v13\nv_lshl_add_u32 v12, v12, 7, v13\nv_and_b32 v13, 31, v0\nv_lshlrev_b32 v13, 7, v13\ns_mov_b32 s62, 0\ns_add_u32 s60, s57, %s\ns_add_u32 s61, s57, %s"%(sigR,sigA))
    g.lab(p); g.guard(16)
    g("buffer_load_dwordx2 v[14:15], v12, s[4:7], s41 offen sc1\nbuffer_load_dwordx2 v[18:19], v13, s[4:7], s42 offen sc1\ns_waitcnt vmcnt(0)\nv_xor_b32 v15, s60, v15\nv_xor_b32 v19, s61, v19\nv_or_b32 v15, v15, v19\nv_cmp_ne_u32 vcc, 0, v15\ns_cbranch_vccnz %s"%p)
    for m in ("quad_perm:[1,0,3,2]","quad_perm:[2,3,0,1]","row_ror:4","row_ror:8"): g("v_max_i32_dpp v14, v14, v14 %s row_mask:0xf bank_mask:0xf\nv_max_i32_dpp v18, v18, v18 %s row_mask:0xf bank_mask:0xf"%(m,m))
    g("v_readlane_b32 s42, v14, 0\nv_readlane_b32 s41, v14, 16\nv_readlane_b32 s60, v14, 32\nv_readlane_b32 s43, v18, 0\nv_readlane_b32 s61, v18, 16\ns_max_i32 s42, s42, s41\ns_max_i32 s42, s42, s60\ns_max_i32 s43, s43, s61")
def est(g,reg,new,skip,dec=1):
    g("s_sub_u32 s60, %s, "%reg+str(dec)+"\ns_max_i32 s60, s60, %s\ns_add_u32 s61, %s, 8\ns_add_u32 s59, %s, 2\ns_cmp_gt_i32 %s, s61\ns_cselect_b32 s60, s59, s60\ns_cmp_lg_u32 %s, 0\ns_cselect_b32 %s, %s, s60"%(new,reg,reg,new,skip,reg,reg))
def F1(g,opt):
    o=lambda k,d:int(opt.get(k,d))
    g("s_sub_u32 s41, s42, s17"); est(g,"s19","s41","s26",o("dec",1))
    g("s_add_u32 s41, s42, %d\ns_cmp_gt_i32 s41, s16\ns_cselect_b32 s56, 1, 0\ns_add_u32 s41, s42, %d\ns_cmp_lg_u32 s56, 0\ns_cselect_b32 s41, s41, s16\ns_add_u32 s17, s41, s18\ns_add_u32 s17, s17, %d"%(o('vmin',11),o('em',35),o('vp',16)))
def F2(g,opt):
    o=lambda k,d:int(opt.get(k,d))
    g("s_sub_u32 s41, s43, s16"); est(g,"s18","s41","s56",o("dec",1))
    g("s_add_u32 s41, s43, %d\ns_cmp_gt_i32 s41, s17\ns_cselect_b32 s26, 1, 0\ns_add_u32 s41, s43, %d\ns_cmp_lg_u32 s26, 0\ns_cselect_b32 s41, s41, s17\ns_add_u32 s16, s41, s19\ns_add_u32 s16, s16, %d"%(o('vmin',11),o('ep',35),o('vm',16)))
def sched_init(g,opt):
    g("s_mov_b32 s16, 0\ns_mov_b32 s17, 0\ns_mov_b32 s18, %d\ns_mov_b32 s19, %d\ns_mov_b32 s26, 1\ns_mov_b32 s56, 1"%(int(opt.get('da',130)),int(opt.get('dr',58))))
def wait_until(g,p,reg,extra):
    g("s_add_u32 s43, %s, s57\ns_add_u32 s43, s43, %d"%(reg,extra))
    g.lab(p); g("s_memrealtime s[58:59]\ns_waitcnt lgkmcnt(0)\ns_sub_u32 s59, s58, s43\ns_cmp_lt_i32 s59, 0\ns_cbranch_scc1 %s"%p); g.dsq=[]
def put_stamp(g,sig,isA):
    g("s_memrealtime s[58:59]\ns_and_b32 s41, %s, 3\ns_mul_i32 s41, s41, 3\ns_add_u32 s41, s41, %d"%(sig,SU+(2 if isA else 0)))
    g("s_lshr_b32 s42, s25, 5\ns_add_u32 s41, s41, s42\ns_lshl_b32 s41, s41, 15\ns_and_b32 s42, s25, 31\ns_lshl_b32 s42, s42, 7\ns_add_u32 s41, s41, s42\ns_add_u32 s42, s57, %s\nv_mov_b32 v15, s42"%sig)
    g("v_mov_b32 v13, s52\nv_writelane_b32 v13, s53, 1\nv_writelane_b32 v13, s54, 2\nv_writelane_b32 v13, s55, 3\nv_xor_b32 v13, 0x1000, v13")
    g("s_waitcnt lgkmcnt(0)\ns_sub_u32 s58, s58, s57\nv_mov_b32 v14, s58\ns_mov_b64 exec, 15\nbuffer_store_dwordx2 v[14:15], v13, s[4:7], s41 offen sc1\ns_mov_b64 exec, -1")
def timedM(g,p,opt,sl):
    g("s_cmp_eq_u32 s40, 0\ns_cbranch_scc1 %s_tm\ns_sub_u32 s50, s40, 1"%p)
    if sl: g("s_sleep %d"%sl)
    stamps(g,p+"_st","s50","s50"); F1(g,opt); F2(g,opt); wait_until(g,p+"_wu","s16",0)
    g.lab(p+"_tm")
def zero(g,a,n):
    for r in range(0,n,2): g("v_mov_b64 v[%d:%d], 0"%(a+r,a+r+1))
def sparse_idx(g): g("v_mov_b32 v7, 0x4444\nv_mov_b32 v12, 0xeeee\nv_cmp_gt_u32 vcc, 8, v2\nv_cndmask_b32 v7, v12, v7, vcc")
def ready_r(g,p):
    g("v_min_u32 v13, 39, v0\nv_lshlrev_b32 v13, 7, v13\ns_mov_b32 s41, %d"%RF); wait_flags(g,p,13,"s41","0",2)

def role_a(g,opt):
    MB=98304; QA=108544; KA=111616; KQ0=114688; KQ1=139264
    MR=16; ACC=32; S=44; KF=56; ST=104; GA=16+0; XF0=104
    g.lab("L_A")
    load_qk(g,True); g.ts(1)
    wait_c(g,"A")
    g("s_and_b32 s41, s27, 3"); sel4(g,"s35",52,"s41")
    sparse_idx(g)
    g("v_mov_b32 v12, 0xf149f2ca\nv_cmp_gt_u32 vcc, 2, v3\nv_cndmask_b32 v6, 0, v12, vcc")
    g("s_mul_i32 s41, s24, 2560\ns_add_u32 s41, s41, %d\nv_add_u32 v4, s41, v1"%MB)
    def paddr(slot):
        g("s_lshl_b32 s41, %s, 3\ns_lshr_b32 s42, s25, 2\ns_add_u32 s41, s41, s42\ns_add_u32 s41, s41, %d"%(slot,PU0))
        comp_s(g,"s42","s41","s43"); g("s_lshl_b32 s41, s41, 15\ns_and_b32 s43, s25, 3\ns_mul_i32 s43, s43, 640\ns_add_u32 s41, s41, s43")
        g("v_and_b32 v12, 7, v2\nv_lshlrev_b32 v12, 4, v12\nv_add_u32 v12, s41, v12\nv_and_b32 v13, 1, v3\nv_lshl_add_u32 v13, v13, 3, v12\nv_add_u32 v13, 512, v13\nv_lshl_add_u32 v12, v3, 7, v12\nv_cmp_gt_u32 vcc, 8, v2")
        for z in range(2):
            g("s_xor_b32 s41, s42, s%d\ns_xor_b32 s43, s42, s%d\nv_mov_b32 v14, s41\nv_mov_b32 v15, s43\nv_cndmask_b32 v14, v15, v14, vcc\nv_add_u32 v%d, v14, v12\nv_add_u32 v%d, v14, v13"%(52+2*z,53+2*z,8+z,10+z))
    def pstore(x,m):
        g("buffer_store_dwordx4 v[%d:%d], v8, s[4:7], 0 offen sc1\nbuffer_store_dwordx4 v[%d:%d], v9, s[4:7], 0 offen sc1\ns_mov_b32 exec_lo, 0"%(x,x+3,x,x+3))
        g("buffer_store_dwordx2 v[%d:%d], v10, s[4:7], 0 offen sc1\nbuffer_store_dwordx2 v[%d:%d], v11, s[4:7], 0 offen sc1\ns_mov_b32 exec_lo, -1"%(m,m+1,m,m+1))
    g("s_lshl_b32 s34, s25, 1\ns_add_u32 s34, s34, s24\ns_sub_u32 s34, s34, 1\ns_lshl_b32 s34, s34, 7\ns_add_u32 s34, s34, %d"%AF)
    for r in range(4): g("v_mov_b32 v%d, -1"%(20+r))
    g("s_min_u32 s50, s24, 2"); paddr("s50"); pstore(20,20)
    g("s_waitcnt vmcnt(0)\ns_barrier\ns_cmp_eq_u32 s24, 0\ns_cbranch_scc1 A_c0\ns_cmp_eq_u32 s24, 3\ns_cbranch_scc1 A_c0"); flag_store(g,"0","s34")
    g.lab("A_c0")
    g("s_mul_i32 s41, s24, 768\ns_add_u32 s41, s41, %d"%QA)
    g("v_lshrrev_b32 v12, 1, v3\nv_mul_u32_u24 v12, 3072, v12\nv_lshl_add_u32 v12, v2, 4, v12\nv_and_b32 v13, 1, v3\nv_lshl_add_u32 v12, v13, 3, v12\nv_add_u32 v120, s41, v12")
    g("v_bfe_u32 v12, v0, 2, 2\nv_lshl_add_u32 v12, v3, 2, v12\nv_lshlrev_b32 v12, 4, v12\nv_and_b32 v13, 1, v0\nv_lshl_add_u32 v12, v13, 3, v12\nv_bfe_u32 v13, v0, 1, 1\nv_mul_u32_u24 v13, 3072, v13\nv_add_u32 v121, v12, v13")
    g("v_add_u32 v121, %d, v121\nv_and_b32 v12, 7, v2\nv_lshlrev_b32 v12, 4, v12\nv_lshl_add_u32 v12, v3, 7, v12\nv_add_u32 v123, %d, v12"%(QA,MB))
    g("s_mov_b32 s36, 2\ns_mov_b32 s37, 0\ns_mov_b32 s38, 1\ns_mov_b32 s40, 0\ns_mov_b32 s48, 0\ns_mov_b32 s49, 0\ns_mov_b32 s30, %s"%fb(SC_A))
    sched_init(g,opt); ready_r(g,"A_rr"); g.ts(2)
    def kqpre(p):
        g("s_and_b32 s41, s50, 1\ns_lshr_b32 s42, s50, 1\ns_cmp_eq_u32 s41, 0\ns_cselect_b32 s43, s48, s49\ns_cmp_gt_u32 s43, s42\ns_cbranch_scc1 %sok"%p)
        g("s_lshl_b32 s51, s41, 6\ns_add_u32 s51, s51, s25\ns_lshl_b32 s51, s51, 7\ns_add_u32 s51, s51, %d\nv_mov_b32 v13, 0\ns_add_u32 s42, s42, 1"%XF)
        wait_flags(g,p+"w",13,"s51","s42",3)
        g("v_readfirstlane_b32 s43, v14\ns_add_u32 s43, s43, s42\ns_cmp_eq_u32 s41, 0\ns_cselect_b32 s48, s43, s48\ns_cselect_b32 s49, s49, s43")
        g.lab(p+"ok")
        g("s_lshl_b32 s42, s50, 5\ns_add_u32 s42, s42, s25\ns_mul_i32 s42, s42, 24576\ns_add_u32 s42, s42, %d\ns_mul_i32 s43, s41, 24576\ns_add_u32 s43, s43, %d"%(KQX,KQ0))
        for q in range(24): g("s_mov_b32 m0, s43\ns_add_u32 s43, s43, 1024\nbuffer_load_dwordx4 v1, s[4:7], s42 offen sc1 lds\ns_add_u32 s42, s42, 1024")
    g.pt0()
    g("s_cmp_lg_u32 s24, 3\ns_cbranch_scc1 A_loop\ns_mov_b32 s50, 0"); kqpre("Ak0")
    g.lab("A_loop")
    slots(g)
    g("s_lshl_b32 s41, s36, 2\ns_add_u32 s41, s41, s24"); page_s(g,"s39","s41","s35")
    g("s_and_b32 s41, s40, 1\ns_mul_i32 s41, s41, 24576\ns_add_u32 s41, s41, %d\nv_add_u32 v122, s41, v1"%KQ0)
    g("s_cmp_eq_u32 s24, 3\ns_cselect_b32 s50, s38, s36"); paddr("s50")
    zero(g,ACC,12); zero(g,GA+8,4)
    for r in range(4): g("v_mov_b32 v%d, v6"%(S+r))
    kfr=lambda kt,kp: KF+(kt*6+kp)*4
    SG=[104,112,48]; MX=124
    def rdw(rho): return [(lambda c=c: g.rd128(SG[rho%3]+4*c,5,(rho//3)*6144+(rho%3)*2048+c*1024)) for c in range(2)]
    for rho in range(3):
        for f in rdw(rho): f()
    if int(opt.get('tm',0)): timedM(g,"A",opt,int(opt.get('sa',4)))
    g.pt(0); gatherM(g,"A",GA,MB,4); g.pt(1)
    g.dsall(); g("s_barrier")
    g.pt(2)
    mreg=lambda k2: MX if k2>=16 else MR+4*(k2%4)
    rdm=lambda k2: (lambda: g.rd128(mreg(k2),123,k2*512))
    rdm(0)(); rdm(16)(); rdm(1)(); rdm(2)(); rdm(3)()
    seq=[]
    for G in range(4):
        for q in range(4):
            seq+=[(4*G+q,t) for t in range(3)]
            if q<3: seq.append((16+G,q))
    side=[]
    def needs(k2,t):
        n=R('v',mreg(k2),4)
        if k2>=16: n=n+R('v',SG[(3*(k2-16)+t)%3],8)
        return n
    for i,(k2,t) in enumerate(seq):
        g.dsneed(needs(k2,t))
        w=('v',SG[(3*(k2-16)+t)%3]) if k2>=16 else WA(k2,t)
        g("v_smfmac_f32_16x16x64_bf16 v[%d:%d], v[%d:%d], %s, v7"%(ACC+4*t,ACC+4*t+3,mreg(k2),mreg(k2)+3,rs(w,8)))
        if k2<16 and t==2 and k2+4<16: side.insert(0,rdm(k2+4))
        if k2>=16:
            rho=3*(k2-16)+t
            if t==2 and k2<19: side.insert(0,rdm(k2+1))
            if rho+3<12: side+=rdw(rho+3)
        if side and not (i+1<60 and g.pending(needs(*seq[i+1]))): side.pop(0)()
    assert not side
    g("s_cmp_lg_u32 s24, 0\ns_cbranch_scc1 A_nk")
    for n in range(12): g.rd128(KF+4*n,122,n*1024)
    g.lab("A_nk")
    for t in range(3):
        a_=ACC+4*t
        g("v_cvt_pk_bf16_f32 v%d, v%d, v%d\nv_cvt_pk_bf16_f32 v%d, v%d, v%d"%(a_,a_,a_+1,a_+1,a_+2,a_+3))
        g.ds("ds_write_b64 v120, v[%d:%d] offset:%d"%(a_,a_+1,t*256))
    g.dsall(); g("s_barrier")
    g.pt(3)
    g("s_cmp_eq_u32 s24, 3\ns_cbranch_scc1 A_w3")
    xfr=lambda kp: [104,108,112,116,124,28][kp]
    for kp in range(6):
        for hf in range(2): g.rdtr(xfr(kp)+hf*2,121,kp*512+hf*256)
    q0=list(g.dsq)
    g("s_cmp_lg_u32 s24, 0\ns_cbranch_scc1 A_w12")
    def softmax(T):
        g("v_max3_f32 v%d, v%d, v%d, v%d\nv_max3_f32 v%d, v%d, v%d, v%d"%(T,S+4,S+5,S+6,T+1,S+7,S+8,S+9))
        g("v_max3_f32 v%d, v%d, v%d, v%d\nv_max3_f32 v%d, v%d, v%d, v%d"%(T,T,S+10,S+11,T+1,T+1,S,S+1))
        g("v_max3_f32 v%d, v%d, v%d, v%d\nv_max_f32 v%d, v%d, v%d"%(T,T,S+2,S+3,T,T,T+1))
        xred(g,"v_max_f32",T,T+1)
        g("v_mul_f32 v%d, s30, v%d"%(T,T))
        for r in range(0,12,2): g("v_pk_fma_f32 v[%d:%d], v[%d:%d], s[30:31], v[%d:%d] op_sel_hi:[1,0,0] neg_lo:[0,0,1] neg_hi:[0,0,1]"%(S+r,S+r+1,S+r,S+r+1,T,T+1))
        for r in range(12): g("v_exp_f32 v%d, v%d"%(S+r,S+r))
        pk=lambda d,a,b: g("v_pk_add_f32 v[%d:%d], v[%d:%d], v[%d:%d]"%(d,d+1,a,a+1,b,b+1))
        pk(T,S,S+2); pk(T+2,S+4,S+6); pk(T,T,S+8); pk(T+2,T+2,S+10); pk(T,T,T+2); g("v_add_f32 v%d, v%d, v%d"%(T,T,T+1))
        xred(g,"v_add_f32",T,T+1)
        g("v_rcp_f32 v%d, v%d"%(T,T))
        for r in (4,6,8,10,0,2): g("v_pk_mul_f32 v[%d:%d], v[%d:%d], v[%d:%d] op_sel_hi:[1,0]"%(S+r,S+r+1,S+r,S+r+1,T,T+1))
        for r in range(4): g("v_cvt_pk_bf16_f32 v%d, v%d, v%d"%(T+4+r,S+4+2*r,S+5+2*r))
        for r in range(2): g("v_cvt_pk_bf16_f32 v%d, v%d, v%d"%(T+8+r,S+2*r,S+1+2*r))
    def smf(B,first):
        for kp in range(6):
            g.dsneed(R('v',xfr(kp),4)+R('v',B(kp),4))
            for tl in ((1,2,0) if kp<5 else (1,2,0)):
                A=xfr(kp) if tl==0 else kfr(tl-1,kp)
                c=first(tl) if kp==0 else "v[%d:%d]"%(S+4*tl,S+4*tl+3)
                g("v_mfma_f32_16x16x32_bf16 v[%d:%d], v[%d:%d], v[%d:%d], %s"%(S+4*tl,S+4*tl+3,A,A+3,B(kp),B(kp)+3,c))
    smf(xfr,lambda tl:"v[%d:%d]"%(S,S+3) if tl==0 else "0")
    T=56
    softmax(T)
    g("v_min_u32 v%d, -2, v%d\nv_min_u32 v%d, -2, v%d"%(T+4,T+4,T+8,T+8))
    for r in (5,6,7,4,9,8): g("v_mov_b32_dpp v%d, v%d row_ror:8 row_mask:0xf bank_mask:0xc"%(T+r,T+r))
    pstore(T+4,T+8)
    if int(opt.get('tm',0)): put_stamp(g,"s40",True)
    g("s_branch A_next")
    g.lab("A_w12"); g.dsq=q0
    qfr=lambda kp: (16+kp*4) if kp<3 else (ACC+(kp-3)*4)
    g("s_sub_u32 s41, s24, 1\ns_mul_i32 s42, s41, 6144\ns_add_u32 s42, s42, 12288\nv_add_u32 v13, s42, v122")
    for kp in range(6): g.rd128(qfr(kp),13,kp*1024)
    for n in range(12): g.rd128(KF+4*n,122,n*1024)
    g.dsall()
    flag_store(g,"s40","s34")
    g("v_mov_b32 v12, 0xf149f2ca\ns_lshl_b32 s41, s41, 4\nv_lshlrev_b32 v14, 2, v3\nv_sub_u32 v14, v2, v14\nv_add_u32 v14, s41, v14")
    for kt in range(2):
        for r in range(4): g("v_cmp_gt_i32 vcc, %d, v14\nv_cndmask_b32 v%d, 0, v12, vcc"%(16*kt+r,S+4+4*kt+r))
    smf(qfr,lambda tl:"v[%d:%d]"%(S+4*tl,S+4*tl+3))
    T=56
    softmax(T)
    g("s_lshl_b32 s41, s40, 5\ns_add_u32 s41, s41, s25\ns_lshl_b32 s41, s41, 1\ns_add_u32 s41, s41, s24\ns_sub_u32 s41, s41, 1\ns_mul_i32 s41, s41, 1280\ns_add_u32 s41, s41, %d"%PX)
    g("v_lshlrev_b32 v12, 4, v2\nv_and_b32 v13, 1, v3\nv_lshl_add_u32 v12, v13, 3, v12")
    g("buffer_store_dwordx4 v[%d:%d], v1, s[4:7], s41 offen sc1\ns_mov_b32 exec_lo, 0\nbuffer_store_dwordx2 v[%d:%d], v12, s[4:7], s41 offen offset:1024 sc1\ns_mov_b32 exec_lo, -1"%(T+4,T+7,T+8,T+9))
    g("s_branch A_next")
    g.lab("A_w3"); g.dsq=[]
    for r in range(4): g("v_mov_b32 v%d, -1"%(20+r))
    pstore(20,20)
    g("s_add_u32 s50, s40, 1\ns_cmp_ge_u32 s50, 64\ns_cbranch_scc1 A_next"); kqpre("Ak1")
    g.lab("A_next"); g.dsq=[]; g.pt(4); g.trdump()
    g("s_add_u32 s40, s40, 1\ns_cmp_lt_u32 s40, %d\ns_cbranch_scc1 A_loop"%g.NS)
    g("s_waitcnt vmcnt(0)\ns_cmp_eq_u32 s24, 0\ns_cbranch_scc1 L_fin\ns_cmp_eq_u32 s24, 3\ns_cbranch_scc1 L_fin"); flag_store(g,"s40","s34")
    g("s_branch L_fin")

def role_b(g,opt):
    MB=81920; VA=MB+10240
    M0=16; GA=16; AV=56; AU=68; VF=16; PA=108
    STG=[88,96,40]
    g.lab("L_B")
    pos=load_vo(g,True); g.ts(1)
    wait_c(g,"B")
    g("s_and_b32 s41, s27, 3"); sel4(g,"s35",52,"s41"); sel4(g,"s33",44,"s24")
    sparse_idx(g)
    g("s_mul_i32 s41, s24, 2560\ns_add_u32 s41, s41, %d\nv_add_u32 v4, s41, v1"%MB)
    def uaddr(slot,d):
        g("s_mul_i32 s41, %s, 20\ns_lshr_b32 s42, s25, 4\ns_add_u32 s41, s41, s42\ns_and_b32 s42, s25, 15\ns_lshl_b32 s42, s42, 8\nv_lshlrev_b32 v15, 4, v2\nv_add_u32 v15, s42, v15"%slot)
        for q in range(3):
            g("v_lshrrev_b32 v12, 1, v3")
            if q<2: g("v_and_b32 v13, 1, v3\nv_lshl_or_b32 v12, v13, 1, v12")
            g("v_add_u32 v12, %d, v12\nv_lshl_add_u32 v12, v12, 1, s41"%(4*q))
            g("v_bfe_u32 v13, v12, 4, 1\nv_lshlrev_b32 v13, 14, v13\nv_bfe_u32 v14, v12, 5, 1\nv_lshlrev_b32 v14, 12, v14\nv_xor_b32 v13, v13, v14\nv_xor_b32 v13, s33, v13\nv_lshlrev_b32 v12, 15, v12\nv_add3_u32 v%d, v12, v13, v15"%(d+q))
    def uclear(slot):
        uaddr(slot,16)
        for r in range(4): g("v_mov_b32 v%d, -1"%(20+r))
        for q in range(3): g("buffer_store_dwordx4 v[20:23], v%d, s[4:7], s32 offen sc1"%(16+q))
    g("s_mov_b32 s32, %d"%RING1)
    g("s_lshl_b32 s34, s25, 7\ns_add_u32 s34, s34, %d"%BF)
    for sl in range(3): g("s_mov_b32 s43, %d"%sl); uclear("s43")
    g("s_waitcnt vmcnt(0)\ns_barrier"); flag_store(g,"0","s34")
    g("s_mul_i32 s41, s24, 10\nv_lshrrev_b32 v12, 1, v3\nv_and_b32 v13, 1, v3\nv_lshl_or_b32 v13, v13, 1, v12\nv_add_u32 v13, s41, v13\nv_lshlrev_b32 v13, 13, v13\ns_lshl_b32 s42, s25, 8\nv_lshlrev_b32 v14, 4, v2\nv_add3_u32 v10, v13, v14, s42")
    g("s_add_u32 s41, s41, 8\nv_add_u32 v12, s41, v12\nv_lshlrev_b32 v12, 13, v12\nv_add3_u32 v11, v12, v14, s42")
    VW,VR,MR=8,9,6
    g("v_lshrrev_b32 v12, 1, v3\nv_lshl_add_u32 v12, v12, 4, v2\nv_lshlrev_b32 v12, 4, v12\nv_and_b32 v13, 1, v3\nv_lshl_add_u32 v12, v13, 3, v12\ns_mul_i32 s41, s24, 768\ns_add_u32 s41, s41, %d\nv_add_u32 v%d, s41, v12"%(VA,VW))
    g("v_bfe_u32 v12, v0, 2, 2\nv_lshl_add_u32 v12, v3, 3, v12\nv_lshlrev_b32 v12, 4, v12\nv_and_b32 v13, 1, v0\nv_lshl_add_u32 v12, v13, 3, v12\nv_add_u32 v%d, %d, v12\nv_add_u32 v%d, %d, v1"%(VR,VA,MR,MB))
    g("s_mov_b32 s36, 2\ns_mov_b32 s37, 0\ns_mov_b32 s38, 1\ns_mov_b32 s40, 0")
    sched_init(g,opt); ready_r(g,"B_rr"); g.ts(2)
    g.pt0()
    g.lab("B_loop")
    slots(g)
    g("s_lshl_b32 s41, s36, 2\ns_add_u32 s41, s41, s24"); page_s(g,"s39","s41","s35")
    uaddr("s36",PA)
    zero(g,GA+8,4); zero(g,AV,12); zero(g,AU,20)
    def rdw(n):
        return [(lambda c=c: g.rd128(STG[n%3]+4*c,5,pos[n%2]+(n//2)*2048+c*1024)) for c in range(2)]
    for f in rdw(0)+rdw(1): f()
    if int(opt.get('tm',0)): timedM(g,"B",opt,int(opt.get('sb',10)))
    g.pt(0); gatherM(g,"B",GA,MB,5); g.pt(1)
    g.dsall(); g("s_barrier")
    g.pt(2)
    for k in range(10): g.rd128(M0+4*k,MR,k*1024)
    for t in range(3):
        po=[]
        if t==2:
            po=[None]*6+[(lambda r=r: g("v_permlane32_swap_b32 v%d, v%d"%(AV+r,AV+4+r))) for r in range(4)]
        for k in range(10):
            if t==0 and k in(0,1,3,6): g.dsneed(R('v',M0+4*{0:0,1:2,3:5,6:9}[k],4))
            g("v_smfmac_f32_16x16x64_bf16 v[%d:%d], v[%d:%d], %s, v7"%(AV+4*t,AV+4*t+3,M0+4*k,M0+4*k+3,rs(WV(2*k,t),8)))
            if po:
                f=po.pop(0)
                if f: f()
    for r in range(4): g("v_add_f32 v%d, v%d, v%d"%(AV+r,AV+r,AV+4+r))
    g("v_cvt_pk_bf16_f32 v%d, v%d, v%d\nv_cvt_pk_bf16_f32 v%d, v%d, v%d"%(AV+4,AV,AV+1,AV+5,AV+2,AV+3))
    g.ds("ds_write_b64 v%d, v[%d:%d]"%(VW,AV+4,AV+5))
    g("v_mov_b64 v[%d:%d], v[%d:%d]\nv_mov_b64 v[%d:%d], v[%d:%d]"%(AV,AV+1,AV+8,AV+9,AV+2,AV+3,AV+10,AV+11))
    halfsum(g,AV+8,AV); g("v_cvt_pk_bf16_f32 v%d, v%d, v%d\nv_cvt_pk_bf16_f32 v%d, v%d, v%d\ns_mov_b32 exec_hi, 0"%(AV,AV+8,AV+9,AV+1,AV+10,AV+11))
    g.ds("ds_write_b64 v%d, v[%d:%d] offset:512"%(VW,AV,AV+1)); g("s_mov_b32 exec_hi, -1")
    g.dsall(); g("s_barrier")
    g.pt(3)
    for kk in range(6):
        for hf in range(2): g.rdtr(VF+4*kk+2*hf,VR,kk*512+hf*64)
    for f in rdw(2): f()
    PK=[48,52,56]
    def post(q):
        a=AU+8*q; y=a+4 if q<2 else a; d=PK[q]; L=[]
        for dd,x in ((d,a),(d+2,y),(d+1,a+2),(d+3,y+2)): L.append(lambda dd=dd,x=x: g("v_cvt_pk_bf16_f32 v%d, v%d, v%d"%(dd,x,x+1)))
        L.append(lambda: g("v_permlane16_swap_b32 v%d, v%d"%(d,d+2)))
        L.append(lambda: g("v_permlane16_swap_b32 v%d, v%d"%(d+1,d+3)))
        L.append(lambda: g("v_min_u32 v%d, -2, v%d"%(d,d)))
        L.append(lambda: g("buffer_store_dwordx4 v[%d:%d], v%d, s[4:7], s32 offen sc1"%(d,d+3,PA+q)))
        return L
    side=[]; wq=[]
    for pr in range(5):
        if pr in(2,4): side+=post(pr//2-1)
        for kk in (0,1,2,3,4,5):
            need=R('v',VF+4*(kk|1),4) if pr==0 else []
            if kk>=4: n=2*pr+kk-4; w=('v',STG[n%3]); need=need+R('v',w[1],8)
            else: w=WOD(kk,pr)
            nw=len(g.l); g.dsneed(need); waited=len(g.l)>nw
            g("v_smfmac_f32_16x16x64_bf16 v[%d:%d], v[%d:%d], %s, v7"%(AU+4*pr,AU+4*pr+3,VF+4*kk,VF+4*kk+3,rs(w,8)))
            if kk>=4 and n+3<10: wq+=rdw(n+3)
            if wq: wq.pop(0)()
            elif side:
                f=side.pop(0)
                if f: f()
    for f in side+post(2):
        if f: f()
    g.pt(4)
    g("s_mul_i32 s41, s40, 327680\ns_add_u32 s41, s41, %d\ns_add_u32 s42, s41, 32768"%UMP)
    g("buffer_store_dwordx4 v[%d:%d], v10, s[4:7], s41 offen sc1\nbuffer_store_dwordx4 v[%d:%d], v10, s[4:7], s42 offen sc1\nbuffer_store_dwordx4 v[%d:%d], v11, s[4:7], s41 offen sc1"%(PK[0],PK[0]+3,PK[1],PK[1]+3,PK[2],PK[2]+3))
    flag_store(g,"s40","s34")
    uclear("s38"); g.trdump()
    g("s_add_u32 s40, s40, 1\ns_cmp_lt_u32 s40, %d\ns_cbranch_scc1 B_loop"%g.NS)
    g("s_waitcnt vmcnt(0)\ns_barrier"); flag_store(g,"s40","s34")
    g("s_branch L_fin")

def role_r(g,opt):
    g.lab("L_R")
    g("s_cmp_ge_u32 s25, 2\ns_cbranch_scc1 R_np")
    g("v_mov_b32 v15, 0\ns_cmp_lg_u32 s25, 0\ns_cbranch_scc1 R_nn\ns_cmp_lg_u32 s24, 0\ns_cbranch_scc1 R_nn")
    g("s_memrealtime s[44:45]\ns_waitcnt lgkmcnt(0)\ns_or_b32 s44, s44, 1\nv_mov_b32 v14, s44\ns_mov_b64 exec, 1\nbuffer_store_dword v14, v15, s[20:23], 0 offen offset:%d sc1\ns_mov_b64 exec, -1"%D_NONCE)
    g.lab("R_nn")
    if opt.get('hostc'): g("s_branch R_np")
    g("s_mul_i32 s30, s25, %d\ns_add_u32 s30, s30, %d\ns_lshl_b32 s42, s24, 7\ns_add_u32 s30, s30, s42"%(RING1+6*32768,PROBEU*32768))
    g("v_mov_b32 v16, -1\nv_lshlrev_b32 v17, 2, v0\nds_write_b32 v17, v16\ns_waitcnt lgkmcnt(0)\ns_barrier\ns_mov_b64 exec, 1\ns_mov_b32 s31, 0")
    g.lab("R_pe")
    g("s_bitcmp1_b32 s24, 0\ns_cselect_b32 s42, -1, 1\ns_mul_i32 s42, s42, s31\ns_lshl_b32 s43, s24, 1\ns_add_u32 s42, s42, s43\ns_and_b32 s42, s42, 7\ns_lshl_b32 s43, s42, 12\ns_add_u32 s41, s30, s43\ns_lshl_b32 s42, s42, 2\nv_mov_b32 v17, s42")
    g("s_memtime s[44:45]\ns_waitcnt lgkmcnt(0)\nbuffer_store_dword v15, v15, s[4:7], s41 offen sc1\ns_waitcnt vmcnt(0)\ns_memtime s[46:47]\ns_waitcnt lgkmcnt(0)\ns_sub_u32 s42, s46, s44\nv_mov_b32 v16, s42\nds_min_u32 v17, v16")
    g("s_add_u32 s31, s31, 1\ns_cmp_lt_u32 s31, %d\ns_cbranch_scc1 R_pe"%int(opt.get('np',12)))
    g("s_waitcnt lgkmcnt(0)\ns_barrier\nds_read_b128 v[16:19], v15\nds_read_b128 v[20:23], v15 offset:16\ns_waitcnt lgkmcnt(0)")
    g("v_add_u32 v24, v16, v17\nv_add_u32 v25, v18, v19\nv_add_u32 v26, v20, v21\nv_add_u32 v27, v22, v23\nv_add_u32 v28, v24, v26\nv_add_u32 v29, v25, v27\nv_cmp_gt_u32 vcc, v28, v29")
    g("v_cndmask_b32 v30, 0, 2, vcc\nv_cndmask_b32 v24, v24, v25, vcc\nv_cndmask_b32 v26, v26, v27, vcc\nv_cndmask_b32 v16, v16, v18, vcc\nv_cndmask_b32 v17, v17, v19, vcc\nv_cndmask_b32 v20, v20, v22, vcc\nv_cndmask_b32 v21, v21, v23, vcc".replace("v_cndmask_b32 v30, 0, 2, vcc","v_cndmask_b32_e64 v30, 0, 2, vcc"))
    g("v_cmp_gt_u32 vcc, v24, v26\nv_cndmask_b32_e64 v31, 0, 4, vcc\nv_cndmask_b32 v16, v16, v20, vcc\nv_cndmask_b32 v17, v17, v21, vcc\nv_cmp_gt_u32 vcc, v16, v17\nv_cndmask_b32_e64 v16, 0, 1, vcc\nv_or3_b32 v16, v16, v30, v31")
    g("s_mov_b32 s42, 0x%x\ns_lshl_b32 s43, s27, 2\ns_lshr_b32 s42, s42, s43\ns_and_b32 s42, s42, 7\ns_xor_b32 s42, s42, 0x%x\nv_xor_b32 v16, s42, v16"%(sum(PI8[x]<<(4*x) for x in range(8)),0x105^int(opt.get('far',0))))
    g("s_lshl_b32 s42, s25, 2\ns_add_u32 s42, s42, %d\ns_cmp_lg_u32 s24, 0\ns_cbranch_scc1 R_pq\nbuffer_store_dword v16, v15, s[20:23], s42 offen sc1"%D_C0)
    g.lab("R_pq"); g("s_mov_b64 exec, -1"); g.ts(1)
    g.lab("R_np")
    g("s_cmp_ge_u32 s25, 32\ns_cbranch_scc1 R_ng")
    g.srd2(12,P_GW,1280)
    g("s_lshl_b32 s41, s25, 2\ns_add_u32 s41, s41, s24\ns_mul_i32 s42, s41, 20480\nv_lshrrev_b32 v12, 2, v0\nv_mul_u32_u24 v12, 1280, v12\nv_and_b32 v13, 3, v0\nv_lshlrev_b32 v13, 4, v13\nv_add_u32 v12, v12, v13\nv_mov_b32 v16, 0\nv_mov_b32 v17, 0\ns_mov_b32 s43, 0xffff0000")
    for k in range(20): g("buffer_load_dwordx4 v[%d:%d], v12, s[8:11], s42 offen offset:%d\nbuffer_load_dwordx4 v[%d:%d], v13, s[12:15], 0 offen offset:%d"%(32+8*k,35+8*k,64*k,36+8*k,39+8*k,64*k))
    for k in range(20):
        g("s_waitcnt vmcnt(%d)"%(38-2*k))
        for d in range(4):
            x=32+8*k+d; w=x+4
            g("v_lshlrev_b32 v18, 16, v%d\nv_lshlrev_b32 v19, 16, v%d\nv_and_b32 v20, s43, v%d\nv_and_b32 v21, s43, v%d\nv_mul_f32 v18, v18, v19\nv_mul_f32 v20, v20, v21\nv_cvt_pk_bf16_f32 v18, v18, v20\nv_lshlrev_b32 v19, 16, v18\nv_and_b32 v20, s43, v18\nv_add_f32 v16, v16, v19\nv_add_f32 v17, v17, v20"%(x,w,x,w))
    g("v_add_f32 v16, v16, v17\nv_add_f32_dpp v16, v16, v16 quad_perm:[1,0,3,2] row_mask:0xf bank_mask:0xf\nv_add_f32_dpp v16, v16, v16 quad_perm:[2,3,0,1] row_mask:0xf bank_mask:0xf")
    g("v_cvt_pk_bf16_f32 v16, v16, v16\nv_lshlrev_b32 v16, 16, v16\nv_mul_f32 v16, %s, v16\nv_exp_f32 v16, v16\nv_add_f32 v16, 1.0, v16\nv_rcp_f32 v16, v16\nv_cvt_pk_bf16_f32 v16, v16, v16\nv_lshlrev_b32 v16, 16, v16\nv_sub_f32 v17, 1.0, v16\nv_cvt_pk_bf16_f32 v17, v17, v17\nv_lshlrev_b32 v17, 16, v17"%fb(-math.log2(math.e)))
    g("s_lshl_b32 s41, s41, 7\ns_add_u32 s41, s41, %d\nv_lshrrev_b32 v12, 2, v0\nv_lshlrev_b32 v12, 3, v12\nbuffer_store_dwordx2 v[16:17], v12, s[4:7], s41 offen sc1"%G)
    g.lab("R_ng")
    wait_c(g,"R")
    g("s_and_b32 s41, s27, 3"); sel4(g,"s35",52,"s41")
    g("s_mul_i32 s30, s25, 205\ns_lshr_b32 s30, s30, 11\ns_mul_i32 s31, s30, 10\ns_sub_u32 s31, s25, s31"); sel4(g,"s33",44,"s30")
    g("v_bfe_u32 v12, v0, 3, 1\nv_lshrrev_b32 v14, 5, v0\nv_lshl_or_b32 v12, v14, 1, v12"); vsel(g,8,12,52,4,13)
    g("s_lshl_b32 s41, s31, 8\nv_and_b32 v9, 7, v0\nv_lshlrev_b32 v9, 4, v9\nv_bfe_u32 v12, v0, 4, 1\nv_lshl_add_u32 v9, v12, 7, v9\nv_add_u32 v9, s41, v9")
    def maddr(slot,d):
        g("s_lshl_b32 s41, %s, 2\ns_add_u32 s41, s41, s30"%slot); page_v(g,d,"s41",8,9)
    g("s_cmp_eq_u32 s24, 3\ns_cbranch_scc1 R_c0"); maddr("s24",16)
    for r in range(4): g("v_mov_b32 v%d, -1"%(20+r))
    g("s_cmp_lg_u32 s24, 0\ns_cbranch_scc1 R_c2")
    g.srd2(12,P_MEM,10240)
    g("v_and_b32 v12, 7, v0\nv_mul_u32_u24 v12, 1280, v12\nv_bfe_u32 v13, v0, 4, 1\nv_lshl_add_u32 v12, v13, 4, v12\ns_lshl_b32 s41, s25, 5\nbuffer_load_dwordx4 v[20:23], v12, s[12:15], s41 offen\ns_waitcnt vmcnt(0)\nv_min_u32 v20, -2, v20")
    g("s_mov_b32 s40, 0"); put_stamp(g,"s40",False)
    g.lab("R_c2"); g("buffer_store_dwordx4 v[20:23], v16, s[4:7], 0 offen sc1")
    g.lab("R_c0"); g("s_waitcnt vmcnt(0)\ns_barrier\ns_lshl_b32 s34, s25, 7\ns_add_u32 s34, s34, %d"%RF); flag_store(g,"0","s34")
    UXF=32; UM=64; PXF=72; PM=88; A0=92; A1=96
    g("v_lshrrev_b32 v12, 3, v2\nv_mul_u32_u24 v12, 640, v12\nv_and_b32 v13, 7, v2\nv_lshlrev_b32 v13, 4, v13\nv_lshl_add_u32 v10, v3, 7, v13\nv_add_u32 v10, v10, v12\nv_mul_u32_u24 v11, 640, v3\nv_add_u32 v11, v11, v13")
    g("v_add_u32 v11, 512, v11\nv_bfe_u32 v12, v0, 3, 2\nv_lshlrev_b32 v12, 8, v12\nv_add_u32 v5, v12, v13\ns_lshl_b32 s41, s24, 10\nv_add_u32 v4, s41, v1")
    g("v_and_b32 v6, 7, v0\ns_lshl_b32 s41, s24, 3\ns_add_u32 s41, s41, 32\nv_add_u32 v6, s41, v6\nv_lshlrev_b32 v6, 7, v6")
    g("s_mov_b32 s36, 2\ns_mov_b32 s37, 0\ns_mov_b32 s38, 1\ns_mov_b32 s40, 0\ns_mov_b32 s48, 0\ns_mov_b32 s49, 0")
    g("v_lshlrev_b32 v13, 8, v0\nv_add_u32 v12, 32, v0\nv_lshlrev_b32 v12, 7, v12\nv_cmp_gt_u32 vcc, 32, v0\nv_cndmask_b32 v13, v12, v13, vcc\ns_mov_b32 s41, %d"%AF)
    assert BF==AF+64*128
    wait_flags(g,"R_ab",13,"s41","0",2); g.ts(2)
    def uxpre(p):
        g("s_and_b32 s41, s50, 1\ns_lshr_b32 s42, s50, 1\ns_cmp_eq_u32 s41, 0\ns_cselect_b32 s43, s48, s49\ns_cmp_gt_u32 s43, s42\ns_cbranch_scc1 %sok"%p)
        g("s_lshl_b32 s51, s41, 13\ns_add_u32 s51, s51, %d\ns_add_u32 s42, s42, 1"%XF)
        wait_flags(g,p+"w",6,"s51","s42",6)
        g("v_min_u32_dpp v14, v14, v14 quad_perm:[1,0,3,2] row_mask:0xf bank_mask:0xf\nv_min_u32_dpp v14, v14, v14 quad_perm:[2,3,0,1] row_mask:0xf bank_mask:0xf\nv_min_u32_dpp v14, v14, v14 row_ror:4 row_mask:0xf bank_mask:0xf\nv_readfirstlane_b32 s43, v14\ns_add_u32 s43, s43, s42")
        g("s_cmp_eq_u32 s41, 0\ns_cselect_b32 s48, s43, s48\ns_cselect_b32 s49, s49, s43")
        g.lab(p+"ok")
        g("s_mul_i32 s42, s50, 40\ns_add_u32 s42, s42, s25\ns_lshl_b32 s42, s42, 15\ns_lshl_b32 s43, s24, 13\ns_add_u32 s42, s42, s43\ns_add_u32 s42, s42, %d\ns_add_u32 s43, s42, 4096"%UX)
        for n in range(8): g("buffer_load_dwordx4 v[%d:%d], v1, s[4:7], s%d offen offset:%d sc1"%(UXF+4*n,UXF+4*n+3,42+n//4,(n%4)*1024))
    g("s_mov_b32 s50, 0"); sched_init(g,opt); uxpre("Ru0"); g.pt0()
    g.lab("R_loop")
    slots(g)
    g("s_mul_i32 s41, s36, 20\ns_lshl_b32 s42, s31, 1\ns_add_u32 s41, s41, s42\ns_lshr_b32 s42, s24, 1\ns_add_u32 s41, s41, s42"); page_s(g,"s39","s41","s33")
    g("s_and_b32 s41, s24, 1\ns_lshl_b32 s41, s41, 11\ns_add_u32 s39, s39, s41\ns_add_u32 s39, s39, %d"%RING1)
    g("s_lshl_b32 s41, s36, 3\ns_lshl_b32 s42, s24, 1\ns_add_u32 s41, s41, s42\ns_add_u32 s41, s41, %d"%PU0); page_s(g,"s28","s41","s35")
    g("s_add_u32 s41, s41, 1"); page_s(g,"s29","s41","s35")
    g("v_mov_b32 v12, s28\nv_mov_b32 v13, s29\nv_cmp_gt_u32 vcc, 8, v2\nv_cndmask_b32 v12, v13, v12, vcc\nv_add_u32 v7, v12, v11")
    g("s_cmp_eq_u32 s24, 0\ns_cselect_b32 s50, s37, s36"); maddr("s50",16)
    TM=int(opt.get('tm',0))
    ldu=lambda: g("buffer_load_dwordx4 v[%d:%d], v1, s[4:7], s39 offen sc1\nbuffer_load_dwordx4 v[%d:%d], v1, s[4:7], s39 offen offset:1024 sc1"%(UM,UM+3,UM+4,UM+7))
    if TM:
        g("s_sleep 6\ns_cmp_eq_u32 s40, 0\ns_cbranch_scc1 R_s0\ns_sub_u32 s50, s40, 1")
        stamps(g,"R_st","s40","s50"); F2(g,opt); g("s_branch R_s1")
        g.lab("R_s0"); g("s_mov_b32 s42, 0")
        g.lab("R_s1"); F1(g,opt)
        g.pt(0)
        wait_until(g,"R_wu","s17",-int(opt.get('ku',0)))
        g("s_mov_b32 s62, 0")
        g.pt(1)
        g.lab("R_p"); ldu()
        if int(opt.get('ku',0)): wait_until(g,"R_wp","s17",0)
    else:
        g("s_mov_b32 s62, 0")
        g.pt(0)
        g.lab("R_u"); g.guard(7); ldu()
        g("s_waitcnt vmcnt(0)\nv_max_u32 v14, v%d, v%d\nv_cmp_eq_u32 vcc, -1, v14\ns_cbranch_vccnz R_u"%(UM,UM+4))
        g.pt(1)
        if g.PT: g("s_mov_b32 s62, 0")
        g.lab("R_p")
    for p in range(4): g("buffer_load_dwordx4 v[%d:%d], v10, s[4:7], s%d offen offset:%d sc1"%(PXF+4*p,PXF+4*p+3,28+p//2,(p&1)*1280))
    g("buffer_load_dwordx4 v[%d:%d], v7, s[4:7], 0 offen sc1"%(PM,PM+3))
    g.guard(8)
    for p in range(4):
        g("s_waitcnt vmcnt(%d)"%(4-p))
        for z,a in ((0,A0),(1,A1)):
            g("v_mfma_f32_16x16x32_bf16 v[%d:%d], v[%d:%d], v[%d:%d], %s"%(a,a+3,UXF+4*(2*p+z),UXF+4*(2*p+z)+3,PXF+4*p,PXF+4*p+3,"0" if p==0 else "v[%d:%d]"%(a,a+3)))
    g("v_max3_u32 v14, v%d, v%d, v%d\ns_waitcnt vmcnt(0)"%(PXF,PXF+4,PXF+8))
    for z,a in ((1,A1),(0,A0)): g("v_mfma_f32_16x16x32_bf16 v[%d:%d], v[%d:%d], v[%d:%d], v[%d:%d]"%(a,a+3,UM+4*z,UM+4*z+3,PM,PM+3,a,a+3))
    g("v_max3_u32 v14, v14, v%d, v%d\nv_max3_u32 v14, v14, v%d, v%d\nv_max_u32 v14, v14, v%d\nv_cmp_eq_u32 vcc, -1, v14\ns_cbranch_vccnz R_p"%(PXF+12,PM,PM+2,UM,UM+4))
    g.pt(2)
    if g.PT: g("s_add_u32 s97, s97, s62")
    if g.TR: g("s_mov_b32 s97, s62")
    for r in range(4): g("v_add_f32_dpp v%d, v%d, v%d row_ror:8 row_mask:0xf bank_mask:0xf"%(A0+r,A1+r,A0+r))
    g("ds_write_b128 v4, v[%d:%d]\ns_waitcnt lgkmcnt(0)\ns_barrier\ns_cmp_lg_u32 s24, 0\ns_cbranch_scc1 R_n0"%(A0,A0+3))
    F=100
    for w in range(4): g.rd128(F+4*w,5,w*1024)
    def padd(d,a,b): g("v_pk_add_f32 v[%d:%d], v[%d:%d], v[%d:%d]"%(d,d+1,a,a+1,b,b+1))
    g.dsneed(R('v',F+4,4)); padd(F,F,F+4); padd(F+2,F+2,F+6)
    g.dsneed(R('v',F+12,4)); padd(F+8,F+8,F+12); padd(F+10,F+10,F+14); padd(F,F,F+8); padd(F+2,F+2,F+10)
    g("v_cvt_pk_bf16_f32 v%d, v%d, v%d\nv_cvt_pk_bf16_f32 v%d, v%d, v%d\nv_cvt_pk_bf16_f32 v%d, v%d, v%d\nv_cvt_pk_bf16_f32 v%d, v%d, v%d\nv_min_u32 v%d, -2, v%d"%(F+8,F,F+1,F+10,F,F+1,F+9,F+2,F+3,F+11,F+2,F+3,F+8,F+8))
    for r,bm in ((10,3),(9,12),(11,3),(8,12)): g("v_mov_b32_dpp v%d, v%d row_ror:8 row_mask:0xf bank_mask:0x%x"%(F+r,F+r,bm))
    g("buffer_store_dwordx4 v[%d:%d], v16, s[4:7], 0 offen sc1"%(F+8,F+11))
    if TM: g("s_add_u32 s50, s40, 1"); put_stamp(g,"s50",False)
    if opt.get('dump'):
        g("s_mul_i32 s41, s40, 10240\ns_lshl_b32 s42, s25, 8\ns_add_u32 s41, s41, s42\ns_add_u32 s41, s41, %d\nv_and_b32 v12, 0xff, v9\nbuffer_store_dwordx4 v[%d:%d], v12, s[4:7], s41 offen sc1"%(DBGW,F+8,F+11))
    g.lab("R_n0"); g.pt(3)
    g("s_cmp_lg_u32 s24, 1\ns_cbranch_scc1 R_n1")
    for r in range(4): g("v_mov_b32 v%d, -1"%(20+r))
    g("buffer_store_dwordx4 v[20:23], v16, s[4:7], 0 offen sc1")
    g.lab("R_n1"); g.trdump()
    if g.TS and not g.PT:
        for i,st in ((3,0),(4,10),(5,30)):
            L=g.uid("rt"); g("s_cmp_lg_u32 s40, %d\ns_cbranch_scc1 %s"%(st,L)); g.ts(i); g.lab(L)
    g("s_add_u32 s40, s40, 1\ns_cmp_ge_u32 s40, %d\ns_cbranch_scc1 L_fin\ns_mov_b32 s50, s40"%(g.NS-1)); uxpre("Ru1")
    g("s_branch R_loop")
```

```python
import sys
from kb import *
from lay import *
import hazard
NAME="gated_mix__memory_aug_recurrent_mem_tr__mha_block__prompt_kernel"
P_X,P_MEM,P_WQ,P_WK,P_WV,P_WO,P_QKV,P_BWO,P_GW,P_OUT,P_DBG,P_WS=64,66,68,70,72,74,80,82,84,86,88,90
WSZ=7864320
SPIN=400000
class G_(K):
    def srd2(s,d,base,nbytes):
        s("s_mov_b32 s%d, s%d\ns_and_b32 s%d, s%d, 0xffff\ns_mov_b32 s%d, 0x%x\ns_mov_b32 s%d, 0x20000"%(d,base,d+1,base+1,d+2,nbytes,d+3))
    TS=False
    def ts(s,i):
        if s.TS: s("s_memrealtime s[58:59]\ns_waitcnt lgkmcnt(0)\ns_mov_b32 s%d, s58"%(92+i)); s.dsq=[]
        if i==1 and 'o' in s.LD: s("s_waitcnt vmcnt(0)\ns_branch L_fin")
    PT=False
    TR=False
    def trdump(s):
        if not s.TR: return
        L=s.uid("tr")
        s("s_cmp_lg_u32 s24, %d\ns_cbranch_scc1 %s\ns_lshl_b32 s58, s2, 6\ns_add_u32 s58, s58, s40\ns_lshl_b32 s58, s58, 5\ns_add_u32 s58, s58, %d\nv_mov_b32 v15, 0\ns_mov_b64 exec, 1"%(s.TW,L,DBGW+0x400000))
        for i in range(6): s("v_mov_b32 v14, s%d\nbuffer_store_dword v14, v15, s[4:7], s58 offen offset:%d"%(93+i,4*i))
        s("s_mov_b64 exec, -1"); s.lab(L)
    def pt(s,i):
        if s.TR: s("s_memrealtime s[58:59]\ns_waitcnt lgkmcnt(0)\ns_mov_b32 s%d, s58"%(93+i)); s.dsq=[]
        if s.PT: s("s_memtime s[58:59]\ns_waitcnt lgkmcnt(0)\ns_sub_u32 s59, s58, s101\ns_add_u32 s%d, s%d, s59\ns_mov_b32 s101, s58"%(93+i,93+i)); s.dsq=[]
    def pt0(s):
        if s.PT:
            s("s_memtime s[58:59]\ns_waitcnt lgkmcnt(0)\ns_mov_b32 s101, s58")
            for i in range(5): s("s_mov_b32 s%d, 0"%(93+i))
    def tsdump(s):
        if not s.TS: return
        s.ts(7)
        s("s_memtime s[58:59]\ns_waitcnt lgkmcnt(0)\ns_sub_u32 s98, s58, s100")
        L=s.uid("td")
        s("s_cmp_lg_u32 s24, %d\ns_cbranch_scc1 %s"%(s.TW,L))
        for i in range(8): s("v_mov_b32 v%d, s%d"%(16+i,92+i))
        s("s_lshl_b32 s58, s2, 5\ns_add_u32 s58, s58, %d\nv_mov_b32 v15, 0\ns_mov_b64 exec, 1\nbuffer_store_dwordx4 v[16:19], v15, s[4:7], s58 offen\nbuffer_store_dwordx4 v[20:23], v15, s[4:7], s58 offen offset:16\ns_waitcnt vmcnt(0)\ns_mov_b64 exec, -1"%TSB)
        s.lab(L)
    def guard(s,code):
        s("s_add_u32 s62, s62, 1\ns_mov_b32 s63, %d\ns_cmp_gt_u32 s62, %d\ns_cbranch_scc1 L_err"%(code,SPIN))
    def divc(s,q,r,p,c,tmp):
        s("v_mul_u32_u24 v%d, %d, v%d\nv_lshrrev_b32 v%d, 20, v%d\nv_mul_u32_u24 v%d, %d, v%d\nv_sub_u32 v%d, v%d, v%d"%(q,((1<<20)+c-1)//c,p,q,q,tmp,c,q,r,p,tmp))
    def dma_voffs(s,dst,nblk,cpr,rowstride,swbit,colbase_s,t0,perm=False):
        for i in range(nblk):
            s("v_add_u32 v%d, %d, v0"%(t0,64*i))
            s.divc(t0+1,t0+2,t0,cpr,t0+3)
            if swbit is not None:
                s("v_bfe_u32 v%d, v%d, %d, 1\nv_lshlrev_b32 v%d, 1, v%d\nv_xor_b32 v%d, v%d, v%d"%(t0+3,t0+1,swbit,t0+3,t0+3,t0+2,t0+2,t0+3))
            if perm:
                s("v_and_b32 v%d, 17, v%d\nv_bfe_u32 v%d, v%d, 1, 1\nv_lshl_or_b32 v%d, v%d, 3, v%d\nv_bfe_u32 v%d, v%d, 2, 2\nv_lshl_or_b32 v%d, v%d, 1, v%d"%(t0+3,t0+1,t0,t0+1,t0+3,t0,t0+3,t0,t0+1,t0+1,t0,t0+3))
            s("v_mul_u32_u24 v%d, %d, v%d\nv_lshlrev_b32 v%d, 4, v%d\nv_add3_u32 v%d, v%d, v%d, %s"%(t0+1,rowstride,t0+1,t0+2,t0+2,dst+i,t0+1,t0+2,colbase_s))
    def tr_addrs(s,vE,vO,rowstride,gmul,base_s,sw,t0):
        s("v_bfe_u32 v%d, v0, 2, 2\nv_mad_u32_u24 v%d, v3, %d, v%d\nv_mul_u32_u24 v%d, %d, v%d"%(t0,t0,gmul,t0,t0,rowstride,t0))
        s("v_and_b32 v%d, 3, v0\nv_lshlrev_b32 v%d, 3, v%d\nv_add3_u32 v%d, v%d, v%d, %s"%(t0+1,t0+1,t0+1,vE,t0,t0+1,base_s))
        if sw:
            s("v_and_b32 v%d, 1, v3\nv_lshlrev_b32 v%d, 5, v%d\nv_sub_u32 v%d, v%d, v%d\nv_add_u32 v%d, v%d, v%d"%(t0,t0,t0,vO,vE,t0,vE,vE,t0))
    def loader(s,chunks,ring,wb):
        pos=0
        for c in chunks:
            sz=c['nblk']*1024
            if pos+sz>ring: pos=0
            c['pos']=pos; pos+=sz
        issued=0; done=0; outq=[]
        def fits(k):
            a=chunks[k]
            for q in range(done-1 if done>0 and chunks[done-1].get('hold') else done,k):
                b=chunks[q]
                if not (a['pos']+a['nblk']*1024<=b['pos'] or b['pos']+b['nblk']*1024<=a['pos']): return False
            return True
        def issue(k):
            c=chunks[k]
            s("s_add_u32 s60, %s, %d"%(c['soff_s'],c['soff_c']))
            for i in range(c['nblk']):
                s("s_add_u32 m0, %s, %d"%(wb,c['pos']+1024*i))
                s("buffer_load_dwordx4 v%d, s[%d:%d], s60 offen lds"%(c['voff']+i,c['srd'],c['srd']+3))
        while done<len(chunks):
            while issued<len(chunks) and fits(issued) and sum(chunks[q]['nblk'] for q in range(done,issued+1))<=60:
                issue(issued); issued+=1
            c=chunks[done]
            if c.get('res'):
                done+=1; continue
            s("s_waitcnt vmcnt(%d)"%sum(chunks[q]['nblk'] for q in range(done+1,issued)))
            for (pref,reg,av,imm) in c['reads']: s.rdtr(reg,av,imm+c['pos'],pref)
            s.dsall(); done+=1
        s("s_waitcnt vmcnt(0)")
def wreg(idx,nA,vbase):
    return ('a',idx) if idx<256 else ('v',vbase+idx-256)
WQK=lambda k2,t: wreg(((k2>>1)*6+t)*8+(k2&1)*4,256,128)
WV =lambda k2,t: wreg(((k2>>1)*3+t)*8+(k2&1)*4,256,112)
WO =lambda k2,t: wreg(240+((k2>>1)*10+t)*8+(k2&1)*4,256,112)
W5 =lambda k2,t: wreg((k2*5+t)*4,256,112)

def coop(g,chunks,ring,nt):
    pos=0
    for c in chunks:
        if pos+c['size']>ring: pos=0
        c['pos']=pos; pos+=c['size']; c['n']=sum(p[2] for p in c['parts'])
    def issue(k):
        c=chunks[k]
        for (srd,voff,nblk,ss,sc,lo) in c['parts']:
            g("s_add_u32 s60, %s, %d\ns_mul_i32 s61, s24, %d\ns_add_u32 s61, s61, %d"%(ss,sc,nblk*1024,c['pos']+lo))
            for i in range(nblk):
                g("s_add_u32 m0, s61, %d\nbuffer_load_dwordx4 v%d, s[%d:%d], s60 offen%s lds"%(1024*i,voff+i,srd,srd+3,nt))
    def free(k,lo):
        a=chunks[k]
        return all(a['pos']+a['size']<=b['pos'] or b['pos']+b['size']<=a['pos'] for b in chunks[lo:k])
    issued=0
    while issued<len(chunks) and free(issued,0): issue(issued); issued+=1
    for d,c in enumerate(chunks):
        g("s_waitcnt vmcnt(%d)\ns_barrier"%sum(x['n'] for x in chunks[d+1:issued]))
        keep=d
        while issued<len(chunks) and free(issued,keep): issue(issued); issued+=1
        for (pref,reg,av,imm) in (c['reads'] if 'r' not in g.LD else []):
            o=imm+c['pos']
            g.rdtr(reg,av+(o>=49152),o-(49152 if o>=49152 else 0),pref)
        g.dsall()
def wrfrag(g,nregs,wstride):
    g("s_barrier\ns_mul_i32 s28, s24, %d\nv_add_u32 v5, s28, v1"%wstride)
    for t in range(nregs//4): g.ds("ds_write_b128 v5, v[%d:%d] offset:%d"%(16+4*t,19+4*t,t*1024))
    g.dsall()
def blk_voffs(g,dst,nblk,cpr,rowstride,colbase_s,perm=False):
    g("s_mul_i32 s61, s24, %d\nv_add_u32 v15, s61, v0"%(64*nblk))
    for i in range(nblk):
        g("v_add_u32 v10, %d, v15"%(64*i)); g.divc(11,12,10,cpr,13)
        if perm: g("v_and_b32 v13, 17, v11\nv_bfe_u32 v10, v11, 1, 1\nv_lshl_or_b32 v13, v10, 3, v13\nv_bfe_u32 v10, v11, 2, 2\nv_lshl_or_b32 v11, v10, 1, v13")
        g("v_mul_u32_u24 v11, %d, v11\nv_lshlrev_b32 v12, 4, v12\nv_add3_u32 v%d, v11, v12, %s"%(rowstride,dst+i,colbase_s))
def tra(g,dst,rowexpr,rowstride,extra,base_s):
    g(rowexpr); g(extra)
    g("v_mul_u32_u24 v10, %d, v10\nv_and_b32 v12, 3, v0\nv_lshl_add_u32 v11, v12, 3, v11\nv_add3_u32 v%d, v10, v11, %s\nv_add_u32 v%d, 49152, v%d"%(rowstride,dst,base_s,dst+1,dst))
ROW8="v_bfe_u32 v10, v0, 2, 2\nv_lshl_add_u32 v10, v3, 3, v10"
ROW4="v_bfe_u32 v10, v0, 2, 2\nv_lshl_add_u32 v10, v3, 2, v10"
ROWD="v_bfe_u32 v10, v0, 2, 1\nv_lshl_add_u32 v10, v3, 2, v10"
WA =lambda k2,t: wreg((k2*3+t)*8,256,128)
WOD=lambda k2,pr: wreg(240+(k2*5+pr)*8,256,112)
def load_qk(g,dup,pre=None):
    g.srd2(12,P_WQ,WSZ); g.srd2(16,P_WK,WSZ)
    g("s_mul_i32 s29, s25, 384\ns_mov_b32 s30, 0")
    blk_voffs(g,112,3,24,12288,"s29")
    if dup:
        g("s_mul_i32 s29, s24, 96"); tra(g,6,ROWD,384,"v_bfe_u32 v11, v0, 3, 1\nv_mul_u32_u24 v11, 12288, v11","s29")
        rd=lambda k2:[((WA(k2,t) if k2<16 else ('v',16+(k2-16)*24+t*8)),2*n,t*32+(16*(n>>1)+2*(n&1))*384) for t in range(3) for n in range(4)]
    else:
        g("s_lshr_b32 s29, s24, 1\ns_mul_i32 s29, s29, 12288\ns_and_b32 s31, s24, 1\ns_mul_i32 s31, s31, 192\ns_add_u32 s29, s29, s31"); tra(g,6,ROW8,384,"v_mov_b32 v11, 0","s29")
        rd=lambda k2:[((WQK(k2,t) if k2<16 else ('v',16+(k2-16)*24+t*4)),2*hf,t*32+hf*1536) for t in range(6) for hf in range(2)]
    if pre: pre()
    ch=[dict(size=24576,parts=[(12,112,3,"s30",k2*32*12288,0),(16,112,3,"s30",k2*32*12288,12288)],reads=[(w[0],w[1]+ro,6,imm) for (w,ro,imm) in rd(k2)]) for k2 in range(20)]
    coop(g,ch,98304,g.NT)
    wrfrag(g,96,24576)
def load_vo(g,dup,pre=None):
    g.srd2(12,P_WV,WSZ); g.srd2(16,P_WO,WSZ)
    g("s_mul_i32 s29, s25, 384\ns_mov_b32 s30, 0\ns_mul_i32 s31, s25, %d"%(192*1280))
    blk_voffs(g,100,3,24,12288,"s29",dup)
    blk_voffs(g,104,5,80,1280,"s30")
    g("s_mul_i32 s29, s24, 96"); tra(g,6,ROW8,384,"v_mov_b32 v11, 0","s29")
    g("s_mul_i32 s29, s24, 320")
    if dup:
        tra(g,8,ROWD,1280,"v_bfe_u32 v11, v0, 3, 1\nv_lshlrev_b32 v11, 5, v11","s29")
        rd=lambda k2,hf:[((WOD(k2,pr) if k2<4 else ('v',16+(k2-4)*40+pr*8)),4*hf+2*n,pr*64+2*n*1280) for pr in range(5) for n in range(2)]
    else:
        tra(g,8,ROW4,1280,"v_mov_b32 v11, 0","s29")
        rd=lambda k2,hf:[((WO(k2,t) if k2<4 else ('v',16+(k2-4)*40+t*4)),2*hf,t*32) for t in range(10)]
    if pre: pre()
    ch=[dict(size=12288,parts=[(12,100,3,"s30",k2*32*12288,0)],reads=[WV(k2,t)[:1]+(WV(k2,t)[1]+2*hf,6,t*32+hf*1536) for t in range(3) for hf in range(2)]) for k2 in range(20)]
    ch+=[dict(size=20480,parts=[(16,104,5,"s31",(k2*32+hf*16)*1280,0)],reads=[(w[0],w[1]+ro,8,imm) for (w,ro,imm) in rd(k2,hf)]) for k2 in range(6) for hf in range(2)]
    coop(g,ch,81920,g.NT)
    wrfrag(g,80,20480)
    return [0,10240]
def get_nonce(g,p):
    if 'o' in g.LD: return
    g("s_mov_b32 s62, 0\nv_mov_b32 v15, %d"%D_NONCE)
    g.lab(p+"wn"); g.guard(9)
    g("buffer_load_dword v14, v15, s[20:23], 0 offen sc1\ns_waitcnt vmcnt(0)\nv_readfirstlane_b32 s57, v14\ns_cmp_eq_u32 s57, 0\ns_cbranch_scc1 %swn"%p)

def flag_store(g,val_s,addr_s):
    g("s_add_u32 s61, s57, %s\nv_mov_b32 v14, s61\nv_mov_b32 v15, 0\ns_mov_b64 exec, 1\nbuffer_store_dword v14, v15, s[4:7], %s offen sc1\ns_mov_b64 exec, -1"%(val_s,addr_s))
def arrive(g,lab):
    g("s_cmp_lg_u32 s24, 0\ns_cbranch_scc1 %s\nv_mov_b32 v14, 1\nv_mov_b32 v15, %d\ns_mov_b64 exec, 1\nbuffer_atomic_add v14, v15, s[20:23], 0 offen sc1\ns_mov_b64 exec, -1"%(lab,D_ARR)); g.lab(lab)

def x_addrs(g,nkp):
    g("v_lshrrev_b32 v8, 3, v0\ns_lshl_b32 s35, s24, 3\nv_add_u32 v7, s35, v8\nv_mul_u32_u24 v7, 1280, v7\nv_and_b32 v9, 7, v0\nv_xor_b32 v9, v9, v8\nv_lshl_add_u32 v7, v9, 4, v7")
    g("v_and_b32 v8, 7, v2\nv_xor_b32 v9, v3, v8\nv_lshlrev_b32 v9, 4, v9\nv_lshl_add_u32 v9, v8, 7, v9\nv_lshrrev_b32 v8, 3, v2\nv_mul_u32_u24 v8, %d, v8\nv_add_u32 v10, v8, v9\nv_xor_b32 v11, 64, v10"%(nkp*1024))

def xgemm(g,p,NT,WR,XB,nseg,res,cvt,stores,load,swap=False,XF_=64,ST=88):
    ACC=16
    def dma_prep():
        g("s_min_u32 s41, s36, %d\ns_lshr_b32 s41, s41, 1\ns_mul_i32 s41, s41, s33\ns_add_u32 s41, s41, s32\ns_mul_i32 s41, s41, 40960\ns_and_b32 s42, s36, 1\ns_mul_i32 s42, s42, 640\ns_add_u32 s41, s41, s42"%(2*nseg-1))
        g("s_mul_i32 s42, s37, 20480\ns_mul_i32 s43, s24, 5120\ns_add_u32 s42, s42, s43\ns_add_u32 s42, s42, %d"%XB)
        g("s_add_u32 s36, s36, 1\ns_add_u32 s37, s37, 1\ns_cmp_eq_u32 s37, 3\ns_cselect_b32 s37, 0, s37")
    def dma1():
        g("s_mov_b32 m0, s42\ns_add_u32 s42, s42, 1024\nbuffer_load_dwordx4 v7, s[8:11], s41 offen lds\ns_add_u32 s41, s41, 128")
    x_addrs(g,5)
    g("s_mov_b32 s36, 0\ns_mov_b32 s37, 0\ns_mov_b32 s39, s32\ns_mov_b32 s40, 0\ns_mov_b32 s44, 0")
    g("s_mov_b32 s48, s4\ns_mov_b32 s49, s5\ns_mov_b32 s50, 0\ns_mov_b32 s51, 0x20000")
    dma_prep()
    for q in range(5): dma1()
    dma_prep()
    for q in range(4): dma1()
    load()
    x_addrs(g,5)
    g("s_waitcnt vmcnt(0)\ns_barrier")
    g("v_add_u32 v4, %d, v10\nv_add_u32 v12, %d, v11"%(XB,XB))
    def rdx(k2,nxt):
        b=XF_+(k2%2)*8; kl=k2%10
        av=(9 if nxt else 4) if kl%2==0 else 12
        g.rd128(b,av,(kl>>1)*1024); g.rd128(b+4,av,10240+(kl>>1)*1024)
    rdx(0,False)
    g.lab(p+"loop")
    g.dsq=[set(R('v',XF_,4)),set(R('v',XF_+4,4))]
    def rdw(k2,t):
        b=ST+((k2*6+t)%6)*4
        g.rd128(b,5,(k2-16)*6144+t*1024)
    pend=stores("s[48:51]")
    for k2 in range(20):
        kl=k2%10
        if kl==8:
            g("s_waitcnt vmcnt(0)\ns_barrier")
            if k2==8:
                flag_store(g,"s40","s34")
            dma_prep()
            g("s_add_u32 s44, s44, 1\ns_cmp_eq_u32 s44, 3\ns_cselect_b32 s44, 0, s44\ns_mul_i32 s43, s44, 20480\ns_add_u32 s43, s43, %d\nv_add_u32 v9, s43, v10\nv_add_u32 v13, s43, v11"%XB)
        b=XF_+(k2%2)*8
        for t in range(NT):
            if t==1: rdx(k2+1,kl==9)
            if (kl in(8,9) and t in(0,3)) or (kl==0 and t==0): dma1()
            if k2<7 and t in (2,4) and pend and (t==2 or len(pend)>6-k2): pend.pop(0)()
            if res and k2>=15:
                u=k2*6+t+4
                if 96<=u<120: rdw(u//6,u%6)
            if res and k2>=16: w=('v',ST+t*4); g.dsneed(R('v',ST+t*4,4))
            else: w=WR(k2,t)
            for rt in range(2):
                g.dsneed(R('v',b+4*rt,4))
                a=ACC+(t*2+rt)*4
                c="0" if k2==0 else "v[%d:%d]"%(a,a+3)
                A,B=rs(w),"v[%d:%d]"%(b+4*rt,b+4*rt+3)
                if swap: A,B=B,A
                g("v_mfma_f32_16x16x32_bf16 v[%d:%d], %s, %s, %s"%(a,a+3,A,B,c))
            if k2==19 and t>=2: cvt(t-2)
        if kl==9: g("v_mov_b32 v4, v9\nv_mov_b32 v12, v13")
    assert not pend
    cvt(NT-2); cvt(NT-1)
    g("s_add_u32 s40, s40, 1\ns_mov_b32 s47, s39\ns_add_u32 s39, s39, s33\ns_mov_b32 s50, 0x10000000")
    L=g.uid("xe")
    g("s_cmp_eq_u32 s40, 1\ns_cselect_b32 s43, 1, 0\ns_cmp_eq_u32 s40, %d\ns_cselect_b32 s43, 1, s43\ns_cmp_eq_u32 s43, 0\ns_cbranch_scc1 %s"%(nseg,L))
    for f in stores("s[4:7]"): f()
    g("s_mov_b32 s50, 0\ns_waitcnt vmcnt(0)\ns_barrier"); flag_store(g,"s40","s34")
    if g.TS: g("s_mov_b32 s95, s94"); g.ts(2)
    g.lab(L)
    g("s_cmp_lt_u32 s40, %d\ns_cbranch_scc1 %sloop"%(nseg,p))
    g.dsall(); g("s_waitcnt vmcnt(0)")

def role_xqk(g):
    g.lab("L_XQK")
    def load(): load_qk(g,False); get_nonce(g,"XQ"); g.ts(1)
    g("s_mov_b32 s32, s26\ns_mov_b32 s33, 2")
    g("s_mul_i32 s45, s25, 24576\ns_add_u32 s45, s45, %d\ns_cmp_lt_u32 s24, 2\ns_cselect_b32 s41, 12288, 0\ns_add_u32 s45, s45, s41\ns_and_b32 s41, s24, 1\ns_mul_i32 s41, s41, 3072\ns_add_u32 s45, s45, s41"%KQX)
    def cvt(t):
        for rt in range(2):
            a=16+(t*2+rt)*4; pk=88+(t>>1)*8+rt*4+(t&1)*2
            if (t&1)==0:
                pass
            g("v_cvt_pk_bf16_f32 v%d, v%d, v%d\nv_cvt_pk_bf16_f32 v%d, v%d, v%d"%(pk,a,a+1,pk+1,a+2,a+3))
    def stores(srd):
        L=[]
        for n,(pr,rt) in enumerate([(pr,rt) for pr in range(3) for rt in range(2)]):
            def f(n=n,pr=pr,rt=rt):
                if n==0: g("s_mul_i32 s52, s47, %d\ns_add_u32 s52, s52, s45\ns_add_u32 s53, s52, 6144"%(32*24576))
                pk=88+pr*8+rt*4
                g("buffer_store_dwordx4 v[%d:%d], v1, %s, s%d offen offset:%d sc1"%(pk,pk+3,srd,52+rt,pr*1024))
            L.append(f)
        return L
    xgemm(g,"XQ",6,WQK,98304,32,True,cvt,stores,load)
    g("s_branch L_T")

def role_xvo(g):
    g.lab("L_XVO")
    XB=81920; VB=XB+40960
    g("s_mov_b32 s39, s26\ns_mov_b32 s40, 0")
    x_addrs(g,10)
    def dma_prep(segs): g("s_mul_i32 s41, %s, 40960\ns_mul_i32 s42, s24, 10240\ns_add_u32 s42, s42, %d"%(segs,XB))
    def dma1(): g("s_mov_b32 m0, s42\ns_add_u32 s42, s42, 1024\nbuffer_load_dwordx4 v7, s[8:11], s41 offen lds\ns_add_u32 s41, s41, 128")
    dma_prep("s39")
    for q in range(10): dma1()
    pos=load_vo(g,False); get_nonce(g,"XV"); g.ts(1)
    x_addrs(g,10)
    g("v_add_u32 v4, %d, v10\nv_add_u32 v8, %d, v11\nv_add_u32 v9, %d, v1"%(XB,XB,VB))
    for t in range(3):
        g("s_mul_i32 s41, s24, 3\ns_add_u32 s41, s41, %d\ns_lshr_b32 s42, s41, 1\ns_lshl_b32 s42, s42, 10\ns_and_b32 s41, s41, 1\ns_lshl_b32 s41, s41, 3\ns_add_u32 s41, s41, s42\nv_add_u32 v%d, s41, v9"%(t,10+t))
    g("s_mul_i32 s45, s24, %d\ns_lshl_b32 s41, s25, 10\ns_add_u32 s45, s45, s41\ns_add_u32 s45, s45, %d"%(10*32768,UX))
    g("s_waitcnt vmcnt(0)")
    g.lab("XVloop")
    g("s_barrier")
    AV=16; XF_=40; VF=64
    def rdx(k2):
        b=XF_+(k2%3)*8; av=4 if k2%2==0 else 8
        g.rd128(b,av,(k2>>1)*1024); g.rd128(b+4,av,20480+(k2>>1)*1024)
    def vw(t):
        for rt in range(2):
            a=AV+(t*2+rt)*4; pk=64+(t*2+rt)*2
            g("v_cvt_pk_bf16_f32 v%d, v%d, v%d\nv_cvt_pk_bf16_f32 v%d, v%d, v%d"%(pk,a,a+1,pk+1,a+2,a+3))
            g.ds("ds_write_b64 v%d, v[%d:%d] offset:%d"%(10+t,pk,pk+1,rt*6144))
    rdx(0); rdx(1)
    for k2 in range(20):
        b=XF_+(k2%3)*8
        for t in range(3):
            if t==1 and k2+2<20: rdx(k2+2)
            for rt in range(2):
                g.dsneed(R('v',b+4*rt,4))
                a=AV+(t*2+rt)*4
                g("v_mfma_f32_16x16x32_bf16 v[%d:%d], %s, v[%d:%d], %s"%(a,a+3,rs(WV(k2,t)),b+4*rt,b+4*rt+3,"0" if k2==0 else "v[%d:%d]"%(a,a+3)))
    AU=24; PK=16; ST=40
    def rdw(t):
        b=ST+(t%3)*8
        for kk in range(2): g.rd128(b+4*kk,5,pos[kk]+t*1024)
    for t in range(3): vw(t)
    g("s_waitcnt vmcnt(0)"); g.dsall(); g("s_barrier")
    for f in range(12): g.rd128(VF+((f%2)*6+f//2)*4,9,((f%2)*6+f//2)*1024)
    rdw(0); rdw(1)
    flag_store(g,"s40","s34")
    g("s_add_u32 s46, s39, 2\ns_min_u32 s46, s46, 63"); dma_prep("s46")
    g("s_mul_i32 s43, s39, %d\ns_add_u32 s43, s43, s45"%(40*32768))
    def epi(t):
        a=AU+(t%2)*8; pk=PK+(t%2)*4
        g("v_cvt_pk_bf16_f32 v%d, v%d, v%d\nv_cvt_pk_bf16_f32 v%d, v%d, v%d\nv_cvt_pk_bf16_f32 v%d, v%d, v%d\nv_cvt_pk_bf16_f32 v%d, v%d, v%d"%(pk,a,a+1,pk+1,a+2,a+3,pk+2,a+4,a+5,pk+3,a+6,a+7))
    def est(t):
        pk=PK+(t%2)*4
        g("buffer_store_dwordx4 v[%d:%d], v1, s[4:7], s43 offen sc1\ns_add_u32 s43, s43, 32768"%(pk,pk+3))
    for t in range(10):
        a=AU+(t%2)*8
        for k2 in range(6):
            if k2==1 and t+2<10: rdw(t+2)
            if k2 in (2,4) and t<5: dma1()
            if k2==3 and t>0: epi(t-1)
            if k2==5 and t>0: est(t-1)
            if k2>=4: w=('v',ST+(t%3)*8+(k2-4)*4); g.dsneed(R('v',w[1],4))
            else: w=WO(k2,t)
            for rt in range(2):
                vf=VF+(rt*6+k2)*4; g.dsneed(R('v',vf,4))
                g("v_mfma_f32_16x16x32_bf16 v[%d:%d], v[%d:%d], %s, %s"%(a+4*rt,a+4*rt+3,vf,vf+3,rs(w),"0" if k2==0 else "v[%d:%d]"%(a+4*rt,a+4*rt+3)))
    epi(9); est(9)
    g("s_add_u32 s40, s40, 1\ns_add_u32 s39, s39, 2")
    L=g.uid("xe")
    g("s_cmp_eq_u32 s40, 1\ns_cselect_b32 s41, 1, 0\ns_cmp_eq_u32 s40, 32\ns_cselect_b32 s41, 1, s41\ns_cmp_eq_u32 s41, 0\ns_cbranch_scc1 %s"%L)
    g("s_waitcnt vmcnt(0)\ns_barrier"); flag_store(g,"s40","s34")
    if g.TS: g("s_mov_b32 s95, s94"); g.ts(2)
    g.lab(L)
    g("s_waitcnt vmcnt(6)\ns_cmp_lt_u32 s40, 32\ns_cbranch_scc1 XVloop")
    g("s_waitcnt vmcnt(0)\ns_branch L_T")

def entry(g,opt):
    g("; @launch kernel=%s grid=(256,1,1) block=(256,1,1) lds=163840"%NAME if False else "; @launch grid=(256,1,1) block=(256,1,1) lds=163840")
    if opt.get('note',1): g("; opts "+" ".join("%s=%s"%kv for kv in sorted(opt.items())))
    g('.amdgcn_target "amdgcn-amd-amdhsa--gfx950"\n.text\n.globl %s\n.p2align 8\n.type %s,@function'%(NAME,NAME))
    g.lab(NAME)
    g("s_cmp_ge_u32 s2, 256\ns_cbranch_scc1 L_end")
    g("s_load_dwordx16 s[64:79], s[0:1], 0\ns_load_dwordx8 s[80:87], s[0:1], 64\ns_load_dwordx4 s[88:91], s[0:1], 96")
    g("v_lshrrev_b32 v1, 6, v0\nv_and_b32 v0, 63, v0\nv_readfirstlane_b32 s24, v1\nv_lshlrev_b32 v1, 4, v0\nv_and_b32 v2, 15, v0\nv_lshrrev_b32 v3, 4, v0")
    g("s_getreg_b32 s27, hwreg(HW_REG_XCC_ID)\ns_and_b32 s27, s27, 7\ns_mov_b32 s62, 0")
    g("s_waitcnt lgkmcnt(0)")
    if g.TS:
        for i in range(8): g("s_mov_b32 s%d, 0"%(92+i))
    g.ts(0)
    if g.TS: g("s_memtime s[58:59]\ns_waitcnt lgkmcnt(0)\ns_mov_b32 s100, s58")
    g.srd2(4,P_WS,0x10000000); g.srd2(8,P_X,2621440); g.srd2(20,P_DBG,256)
    g.srd2(12,P_WQ,WSZ); g.srd2(16,P_WO,WSZ)
    if opt.get('spread'): g("s_bfe_u32 s28, s2, 0x30001\ns_and_b32 s29, s2, 1\ns_lshr_b32 s30, s2, 4\ns_lshl_b32 s30, s30, 1\ns_or_b32 s29, s29, s30\ns_lshr_b32 s30, s2, 3\ns_and_b32 s30, s30, 1\ns_lshl_b32 s30, s30, 2\ns_bfe_u32 s28, s2, 0x20001\ns_or_b32 s28, s28, s30")
    else: g("s_and_b32 s28, s2, 7\ns_lshr_b32 s29, s2, 3")
    if 'x' in g.LD: g("s_cmp_ge_u32 s28, 4\ns_cbranch_scc1 L_fin")
    if 'h' in g.LD: g("s_cmp_ge_u32 s29, 16\ns_cbranch_scc1 L_fin")
    g("s_cmp_ge_u32 s28, 4\ns_cbranch_scc1 L_X")
    g("s_lshl_b32 s25, s28, 3\ns_add_u32 s25, s25, s29\ns_cmp_lt_u32 s29, 8\ns_cbranch_scc1 L_A")
    g("s_sub_u32 s25, s25, 8\ns_cmp_lt_u32 s29, 16\ns_cbranch_scc1 L_B")
    if 'o' in g.LD: g("s_branch L_fin")
    g("s_mul_i32 s25, s28, 10\ns_add_u32 s25, s25, s29\ns_sub_u32 s25, s25, 16\ns_cmp_lt_u32 s29, 26\ns_cbranch_scc1 L_R")
    g("s_mul_i32 s25, s28, 6\ns_add_u32 s25, s25, s29\ns_sub_u32 s25, s25, 26\ns_branch L_B1")
    g.lab("L_X")
    g("s_sub_u32 s25, s28, 4\ns_lshl_b32 s25, s25, 3\ns_and_b32 s30, s29, 7\ns_add_u32 s25, s25, s30\ns_lshr_b32 s26, s29, 4")
    g("s_lshr_b32 s30, s29, 3\ns_lshl_b32 s30, s30, 5\ns_add_u32 s34, s30, s25\ns_lshl_b32 s34, s34, 7\ns_add_u32 s34, s34, %d"%XF)
    g("s_bitcmp1_b32 s29, 3\ns_cbranch_scc1 L_XVO\ns_branch L_XQK")
def tail(g):
    g.lab("L_err")
    g("v_mov_b32 v14, s63\nv_mov_b32 v15, %d\ns_mov_b64 exec, 1\nbuffer_store_dword v14, v15, s[20:23], 0 offen sc1\ns_waitcnt vmcnt(0)"%D_ERR)
    g.lab("L_end"); g("s_endpgm")
    g(kdesc(NAME,512,102,256))
def build(opt):
    g=G_(); g.LD=opt.get('ld',''); g.NT=' nt' if opt.get('nt') else ''; g.TS=bool(int(opt.get('ts',0))); g.PT='pt' in opt; g.TW=int(opt.get('pt',opt.get('tr',0))); g.TR='tr' in opt
    entry(g,opt)
    role_xqk(g); role_xvo(g)
    import roles2
    roles2.emit(g,opt)
    tail(g)
    t=g.text()
    def region(t,a,b,f):
        L=t.split("\n"); i=L.index(a); j=[k for k,l in enumerate(L) if l.startswith(b)][0]
        return "\n".join(L[:i]+[l for l in L[i:j] if f(l)]+L[j:])
    xe=opt.get('xe','')
    for a,b in (("XQloop:","s_cbranch_scc1 XQloop"),("XVloop:","s_cbranch_scc1 XVloop")):
        if 'b' in xe: t=region(t,a,b,lambda l: not l.startswith("s_barrier"))
        if 'd' in xe: t=region(t,a,b,lambda l: not l.endswith("lds"))
        if 'r' in xe: t=region(t,a,b,lambda l: not l.startswith("ds_read_b128"))
        if 't' in xe: t=region(t,a,b,lambda l: not l.startswith("ds_read_b64_tr"))
        if 'w' in xe: t=region(t,a,b,lambda l: not l.startswith("s_waitcnt lgkm"))
    if opt.get('xst')=='plain': t="\n".join(l.replace(" sc1","") if l.startswith("buffer_store_dwordx4") else l for l in t.split("\n"))
    if opt.get('xst')=='none': t="\n".join(l for l in t.split("\n") if not (l.startswith("buffer_store_dwordx4") and "sc1" in l))
    if opt.get('xst')=='nt': t="\n".join(l.replace(" sc1"," sc1 nt") if l.startswith("buffer_store_dwordx4") else l for l in t.split("\n"))
    return hazard.process(t,opt.get('v'))
if __name__=="__main__":
    opt=dict(a.split("=") for a in sys.argv[2:])
    open(sys.argv[1],"w").write(build(opt))
```
